```python
import torch

def _softmax(x, axis=-1):
    return torch.softmax(x, dim=axis)
def _gelu(x):
    return torch.nn.functional.gelu(x, approximate="tanh")
def _silu(x):
    return torch.nn.functional.silu(x)
def _sigmoid(x):
    return torch.sigmoid(x)
def _layernorm(x, axis=-1, eps=1e-5):
    m = x.mean(dim=axis, keepdim=True)
    v = x.var(dim=axis, keepdim=True, unbiased=False)
    return (x - m) / torch.sqrt(v + eps)
def _scatter_add(tgt, idx, src, axis=0):
    return tgt.clone().index_add_(axis, idx, src)
def _segment_sum(src, seg, n):
    out = torch.zeros((n,) + src.shape[1:], dtype=src.dtype)
    return out.index_add_(0, seg, src)
def _pad(x, pw):
    flat = tuple(v for pair in reversed(pw) for v in pair)
    return torch.nn.functional.pad(x, flat)

kernel_name = 'recurrent_scan__spectral_fnet__glu_gated_reglu__prompt'

def setup_inputs():

    _w = (lambda a: (lambda t: t.to(torch.bfloat16) if t.is_floating_point() else t)(torch.as_tensor(a)))
    def _A_setup():
        B, S, D = 1, 2048, 512
        ns = torch.arange(S)[:, None] * torch.arange(S)[None, :]
        nd = torch.arange(D)[:, None] * torch.arange(D)[None, :]
        Ws_re = torch.cos(-2.0 * torch.pi * ns / S).to(float)
        Ws_im = torch.sin(-2.0 * torch.pi * ns / S).to(float)
        Wd_re = torch.cos(-2.0 * torch.pi * nd / D).to(float)
        Wd_im = torch.sin(-2.0 * torch.pi * nd / D).to(float)
        return {
            "x": _w((lambda *s: torch.randn(*s, dtype=torch.bfloat16) * 0.05)(B, S, D)),
            "dft_seq_re": _w(Ws_re),
            "dft_seq_im": _w(Ws_im),
            "dft_hid_re": _w(Wd_re),
            "dft_hid_im": _w(Wd_im),
        }
    _A_in = _A_setup()

    def _B_setup():
        B, S, D, F = 1, 2048, 512, 1792
        return {
            "x": _w((lambda *s: torch.randn(*s, dtype=torch.bfloat16) * 0.05)(B, S, D)),
            "W_gate": _w((lambda *s: torch.randn(*s, dtype=torch.bfloat16) * 0.05)(D, F) * (2.0 / D) ** 0.5),
            "W_up": _w((lambda *s: torch.randn(*s, dtype=torch.bfloat16) * 0.05)(D, F) * (2.0 / D) ** 0.5),
            "W_down": _w((lambda *s: torch.randn(*s, dtype=torch.bfloat16) * 0.05)(F, D) * (1.0 / F) ** 0.5),
        }
    _B_in = _B_setup()

    return {
        "A_x": _A_in["x"],
        "A_dft_seq_re": _A_in["dft_seq_re"],
        "A_dft_seq_im": _A_in["dft_seq_im"],
        "A_dft_hid_re": _A_in["dft_hid_re"],
        "A_dft_hid_im": _A_in["dft_hid_im"],
        "B_x": _B_in["x"],
        "B_W_gate": _B_in["W_gate"],
        "B_W_up": _B_in["W_up"],
        "B_W_down": _B_in["W_down"],
    }

def reference(A_x, A_dft_seq_re, A_dft_seq_im, A_dft_hid_re, A_dft_hid_im, B_x, B_W_gate, B_W_up, B_W_down):
    def _A_ref(x, dft_seq_re, dft_seq_im, dft_hid_re, dft_hid_im):
        a = torch.einsum("bsd,ed->bse", x, dft_hid_re)
        b = torch.einsum("bsd,ed->bse", x, dft_hid_im)
        y = torch.einsum("ts,bse->bte", dft_seq_re, a) - torch.einsum("ts,bse->bte", dft_seq_im, b)
        return y

    def _B_ref(x, W_gate, W_up, W_down):
        gate = torch.einsum("bsd,df->bsf", x, W_gate)
        up = torch.einsum("bsd,df->bsf", x, W_up)
        gate = gate * (lambda x, dt: x.to(dt))(gate > 0, gate.dtype)
        h = gate * up
        return torch.einsum("bsf,fd->bsd", h, W_down)

    x = A_x
    xn = _layernorm(x, axis=-1)
    s = _A_ref(xn, A_dft_seq_re, A_dft_seq_im, A_dft_hid_re, A_dft_hid_im)
    g = _silu(_B_ref(xn, B_W_gate, B_W_up, B_W_down))
    return x + s * g
```

```python
HF=0; WF=0x700000; CF=0x8C0000; AF=0xCC0000; A1024=0xDC0000; WSZ=0xDC0400
class Asm:
    def __init__(s): s.l=[]
    def __call__(s,x): s.l.append('    '+x)
    def lab(s,x): s.l.append(x+':')
    def txt(s): return '\n'.join(s.l)+'\n'

def srd(a,reg,ptr,size):
    a(f's_mov_b32 s{reg}, s{ptr}'); a(f's_and_b32 s{reg+1}, s{ptr+1}, 0xffff')
    a(f's_mov_b32 s{reg+2}, {hex(size)}'); a(f's_mov_b32 s{reg+3}, 0x20000')

def mirror_row(a,dst,tmp):
    a(f'v_sub_u32 v{dst}, 0x800, v{dst}')
    a(f'v_cmp_eq_u32 vcc, 0x800, v{dst}')
    a(f'v_mov_b32 v{tmp}, 0x400'); a('s_nop 0')
    a(f'v_cndmask_b32 v{dst}, v{dst}, v{tmp}, vcc')

def k1():
    a=Asm()
    K='fnet_k1_kernel'
    a.l.append(f'.globl {K}\n.p2align 8\n.type {K},@function\n{K}:')
    a('s_cmp_ge_u32 s2, 256'); a('s_cbranch_scc1 K1_END')
    a('s_load_dwordx4 s[36:39], s[0:1], 0')
    a('s_load_dwordx4 s[40:43], s[0:1], 16')
    a('s_load_dwordx2 s[44:45], s[0:1], 32')
    a('s_load_dwordx4 s[48:51], s[0:1], 48')
    a('s_load_dwordx2 s[52:53], s[0:1], 64')
    a('s_load_dwordx2 s[54:55], s[0:1], 88')
    a('s_and_b32 s3, s2, 7'); a('s_lshr_b32 s4, s2, 3')
    a('s_and_b32 s5, s3, 1'); a('s_lshl_b32 s5, s5, 3'); a('s_and_b32 s6, s4, 7'); a('s_add_u32 s5, s5, s6')
    a('s_lshr_b32 s6, s3, 1'); a('s_lshl_b32 s6, s6, 2'); a('s_lshr_b32 s7, s4, 3'); a('s_add_u32 s6, s6, s7')
    a('v_and_b32 v1, 63, v0')
    a('v_lshrrev_b32 v2, 6, v0')
    a('s_nop 0')
    a('v_readfirstlane_b32 s7, v2')
    a('s_cmp_ge_u32 s6, 14'); a('s_cselect_b32 s56, 1, 0')
    a('v_lshrrev_b32 v3, 3, v1')
    a('v_and_b32 v4, 7, v1')
    a('s_cmp_eq_u32 s56, 1'); a('s_cbranch_scc1 K1_ROWS_DFT')
    a('s_lshr_b32 s8, s7, 1'); a('s_lshl_b32 s9, s5, 2'); a('s_add_u32 s8, s8, s9')
    a('s_and_b32 s9, s7, 1'); a('s_lshl_b32 s9, s9, 4')
    a('s_lshr_b32 s10, s8, 1'); a('s_lshl_b32 s10, s10, 5'); a('s_add_u32 s9, s9, s10')
    a('v_add_u32 v5, s9, v3'); a('v_add_u32 v6, 8, v5')
    a('s_and_b32 s8, s8, 1'); a('s_cmp_eq_u32 s8, 0'); a('s_cbranch_scc1 K1_ROWS_A')
    mirror_row(a,5,7); mirror_row(a,6,7)
    a.lab('K1_ROWS_A')
    a('s_lshl_b32 s9, s7, 4'); a('v_add_u32 v7, s9, v3'); a('v_add_u32 v8, 8, v7')
    a('s_branch K1_ROWS_DONE')
    a.lab('K1_ROWS_DFT')
    a('s_lshl_b32 s9, s5, 6'); a('s_lshl_b32 s10, s7, 3'); a('s_add_u32 s9, s9, s10')
    a('v_add_u32 v5, s9, v3'); a('v_mov_b32 v6, v5')
    mirror_row(a,6,7)
    a('v_add_u32 v7, s10, v3'); a('v_add_u32 v8, 64, v7')
    a.lab('K1_ROWS_DONE')
    a('v_lshlrev_b32 v9, 4, v4')
    a('v_lshl_add_u32 v5, v5, 10, v9'); a('v_lshl_add_u32 v6, v6, 10, v9')
    for R in (7,8):
        a(f'v_and_b32 v10, 15, v{R}'); a('v_xor_b32 v10, v10, v4'); a('v_lshlrev_b32 v10, 4, v10')
        a(f'v_lshl_add_u32 v{R}, v{R}, 10, v10')
    a('s_waitcnt lgkmcnt(0)')
    srd(a,8,36,2048*1024)
    srd(a,32,54,WSZ)
    for jj in range(8): a(f'buffer_load_dwordx4 v[{64+4*jj}:{67+4*jj}], v5, s[8:11], 0 offen offset:{128*jj}')
    for jj in range(8): a(f'buffer_load_dwordx4 v[{96+4*jj}:{99+4*jj}], v6, s[8:11], 0 offen offset:{128*jj}')
    a('s_cmp_eq_u32 s56, 1')
    a('s_cselect_b32 s48, s42, s48'); a('s_cselect_b32 s49, s43, s49')
    a('s_cselect_b32 s50, s44, s50'); a('s_cselect_b32 s51, s45, s51')
    a('s_mov_b32 s57, 3584'); a('s_mov_b32 s59, 0x1C0000')
    a('s_cselect_b32 s57, 1024, s57')
    a('s_cselect_b32 s59, 0x80000, s59')
    srd(a,12,48,0); srd(a,16,50,0)
    a('s_mov_b32 s14, s59'); a('s_mov_b32 s18, s59')
    a('s_sub_u32 s58, s6, 14'); a('s_cmp_eq_u32 s56, 1'); a('s_cselect_b32 s58, s58, s6'); a('s_lshl_b32 s58, s58, 8')
    a('v_lshrrev_b32 v10, 4, v1'); a('s_lshl_b32 s20, s7, 3'); a('v_add_u32 v11, s20, v10')
    a('v_mul_lo_u32 v11, v11, s57')
    a('v_lshlrev_b32 v10, 2, v10'); a('v_and_b32 v12, 15, v1'); a('v_xor_b32 v10, v10, v12')
    a('v_lshl_add_u32 v11, v10, 4, v11'); a('v_add_u32 v11, s58, v11')
    a('s_lshl_b32 s60, s57, 2')
    a('s_lshl_b32 s61, s57, 6')
    a('s_lshl_b32 s62, s7, 11')
    def dma(stage,rb):
        a(f's_mul_i32 s63, s61, {stage}'); a('s_add_u32 s64, s63, s60')
        for part,sr in ((0,12),(1,16)):
            for q in range(2):
                a(f's_add_u32 m0, s62, {rb+part*16384+q*1024}')
                a('s_nop 0')
                a(f'buffer_load_dwordx4 v11, s[{sr}:{sr+3}], s{63+q} offen lds')
    dma(0,131072)
    a('s_lshr_b32 s20, s2, 7'); a('s_cmp_eq_u32 s20, 1')
    a('s_cselect_b32 s38, s40, s38'); a('s_cselect_b32 s39, s41, s39')
    srd(a,20,38,2048*4096)
    a('s_lshr_b32 s24, s2, 2'); a('s_and_b32 s24, s24, 31'); a('s_and_b32 s25, s2, 3')
    a('v_and_b32 v12, 31, v1'); a('v_lshrrev_b32 v13, 5, v1')
    a('s_lshl_b32 s26, s24, 5'); a('v_add_u32 v14, s26, v12'); a('v_lshlrev_b32 v14, 12, v14')
    a('s_lshl_b32 s26, s25, 4'); a('s_add_u32 s26, s26, s7'); a('s_lshl_b32 s27, s26, 5')
    a('v_lshl_add_u32 v14, v13, 3, v14'); a('v_add_u32 v14, s27, v14')
    a('buffer_load_dwordx2 v[32:33], v14, s[20:23], 0 offen')
    a('buffer_load_dwordx2 v[34:35], v14, s[20:23], 0 offen offset:16')
    a('buffer_load_dwordx2 v[36:37], v14, s[20:23], 0 offen offset:256')
    a('buffer_load_dwordx2 v[38:39], v14, s[20:23], 0 offen offset:272')
    a('s_lshr_b32 s65, s2, 2'); a('s_lshl_b32 s65, s65, 6'); a('s_add_u32 s65, s65, s26'); a('s_lshl_b32 s65, s65, 10')
    a(f's_add_u32 s65, s65, {CF}')
    srd(a,20+4,52,1792*1024)
    a('s_min_u32 s28, s2, 223'); a('s_mul_i32 s29, s28, 4682'); a('s_lshr_b32 s29, s29, 16')
    a('s_mul_i32 s30, s29, 14'); a('s_sub_u32 s30, s28, s30'); a('s_lshl_b32 s30, s30, 3'); a('s_add_u32 s30, s30, s7')
    a('s_lshr_b32 s31, s29, 1'); a('s_lshl_b32 s31, s31, 5')
    a('v_add_u32 v14, s31, v12')
    a('s_and_b32 s31, s29, 1'); a('s_cmp_eq_u32 s31, 0'); a('s_cbranch_scc1 K1_WD_A')
    a('v_sub_u32 v14, 0x200, v14'); a('v_cmp_eq_u32 vcc, 0x200, v14'); a('v_mov_b32 v15, 0x100'); a('s_nop 0'); a('v_cndmask_b32 v14, v14, v15, vcc')
    a.lab('K1_WD_A')
    a('v_lshlrev_b32 v14, 1, v14'); a('v_lshl_add_u32 v14, v13, 12, v14')
    a('s_lshl_b32 s31, s30, 14'); a('s_add_u32 s66, s31, 8192')
    for g,so in ((0,'s31'),(1,'s66')):
        for i in range(4):
            a(f'buffer_load_ushort v{56+4*g+i}, v14, s[24:27], {so} offen offset:{1024*i}')
    a('s_lshl_b32 s66, s28, 3'); a('s_add_u32 s66, s66, s7'); a('s_lshl_b32 s66, s66, 10'); a(f's_add_u32 s66, s66, {WF}')
    a('s_mov_b32 s67, 0x3f803f80')
    a('v_mov_b32 v16, 0'); a('v_mov_b32 v17, 0'); a('v_mov_b32 v18, 0'); a('v_mov_b32 v19, 0')
    a('s_waitcnt vmcnt(24)')
    for d in range(32):
        a(f'v_dot2_f32_bf16 v16, v{64+d}, s67, v16'); a(f'v_dot2_f32_bf16 v17, v{64+d}, v{64+d}, v17')
    a('s_waitcnt vmcnt(16)')
    for d in range(32):
        a(f'v_dot2_f32_bf16 v18, v{96+d}, s67, v18'); a(f'v_dot2_f32_bf16 v19, v{96+d}, v{96+d}, v19')
    a('s_nop 3')
    for ctl in ('quad_perm:[1,0,3,2]','quad_perm:[2,3,0,1]','row_half_mirror'):
        for r in (16,17,18,19):
            a(f'v_add_f32_dpp v{r}, v{r}, v{r} {ctl} row_mask:0xf bank_mask:0xf')
        a('s_nop 1')
    a('s_mov_b32 s68, 0x3b000000')
    a('s_mov_b32 s69, 0x3727c5ac')
    for (sm,sq,rr,mm) in ((16,17,20,22),(18,19,24,26)):
        a(f'v_mul_f32 v{sm}, s68, v{sm}')
        a(f'v_mul_f32 v{sq}, s68, v{sq}')
        a(f'v_fma_f32 v{sq}, -v{sm}, v{sm}, v{sq}')
        a(f'v_max_f32 v{sq}, 0, v{sq}')
        a(f'v_add_f32 v{sq}, s69, v{sq}')
        a(f'v_rsq_f32 v{rr}, v{sq}')
        a('s_nop 0')
        a(f'v_mul_f32 v{mm}, v{sm}, v{rr}')
        a(f'v_sub_f32 v{mm}, 0, v{mm}')
    a('s_mov_b32 s70, 0xffff0000')
    a('v_xor_b32 v28, 128, v7'); a('v_xor_b32 v29, 128, v8')
    a('s_cmp_eq_u32 s56, 1'); a('s_cbranch_scc1 K1_NORM_DFT')
    def unpack(dst,src):
        a(f'v_lshlrev_b32 v{dst}, 16, v{src}'); a(f'v_and_b32 v{dst+1}, s70, v{src}')
    def wr(jj):
        for (base,ae,ao) in ((64,7,28),(96,8,29)):
            ad=ao if jj&1 else ae
            a(f'ds_write_b128 v{ad}, v[{base+4*jj}:{base+3+4*jj}] offset:{(jj>>1)*256}')
    for jj in range(8):
        for (base,rr,mm) in ((64,20,22),(96,24,26)):
            for d in range(4):
                t=44+4*(d&1)
                s=base+4*jj+d
                unpack(t,s)
                a(f'v_pk_fma_f32 v[{t}:{t+1}], v[{t}:{t+1}], v[{rr}:{rr+1}], v[{mm}:{mm+1}] op_sel_hi:[1,0,0]')
                a(f'v_cvt_pk_bf16_f32 v{s}, v{t}, v{t+1}')
        wr(jj)
    a('s_branch K1_NORM_DONE')
    a.lab('K1_NORM_DFT')
    a('s_lshl_b32 s71, s5, 3'); a('s_add_u32 s71, s71, s7')
    a('v_or_b32 v30, s71, v3'); a('v_cmp_eq_u32 vcc, 0, v30')
    a('v_mov_b32 v30, 1.0'); a('v_mov_b32 v31, -1.0')
    a('v_cndmask_b32 v52, v30, 0, vcc') if False else None
    a('v_mov_b32 v53, 0')
    a('v_cndmask_b32 v52, v30, v53, vcc')
    a('v_cndmask_b32 v54, v30, v53, vcc')
    a('v_cndmask_b32 v40, v31, v30, vcc')
    for jj in range(8):
        for d in range(4):
            s1=64+4*jj+d; s2=96+4*jj+d
            unpack(44,s1); unpack(46,s2)
            a('v_pk_fma_f32 v[44:45], v[44:45], v[20:21], v[22:23] op_sel_hi:[1,0,0]')
            a('v_pk_fma_f32 v[46:47], v[46:47], v[24:25], v[26:27] op_sel_hi:[1,0,0]')
            a('v_pk_fma_f32 v[48:49], v[46:47], v[52:53], v[44:45] op_sel_hi:[1,0,1]')
            a('v_pk_mul_f32 v[50:51], v[46:47], v[40:41] op_sel_hi:[1,0]')
            a('v_pk_fma_f32 v[50:51], v[44:45], v[54:55], v[50:51] op_sel_hi:[1,0,1]')
            a(f'v_cvt_pk_bf16_f32 v{s1}, v48, v49'); a(f'v_cvt_pk_bf16_f32 v{s2}, v50, v51')
        wr(jj)
    a.lab('K1_NORM_DONE')
    a('v_lshlrev_b32 v14, 4, v1')
    a('s_waitcnt vmcnt(0)')
    for q in range(4): a(f'v_lshl_or_b32 v{40+q}, v{57+2*q}, 16, v{56+2*q}')
    a('buffer_store_dwordx4 v[32:35], v14, s[32:35], s65 offen')
    a('s_add_u32 s65, s65, 8192')
    a('buffer_store_dwordx4 v[36:39], v14, s[32:35], s65 offen')
    a('s_cmp_ge_u32 s2, 224'); a('s_cbranch_scc1 K1_NOWD')
    a('buffer_store_dwordx4 v[40:43], v14, s[32:35], s66 offen')
    a.lab('K1_NOWD')
    a('s_and_b32 s72, s7, 3'); a('s_lshr_b32 s73, s7, 2')
    a('s_lshl_b32 s20, s72, 5'); a('v_add_u32 v15, s20, v12')
    a('v_and_b32 v16, 15, v15'); a('v_xor_b32 v16, v16, v13'); a('v_lshlrev_b32 v16, 4, v16')
    a('v_lshl_add_u32 v15, v15, 10, v16')
    for m in range(8): a(f'v_xor_b32 v{16+m}, {32*m}, v15')
    a('s_waitcnt lgkmcnt(0)'); a('s_barrier')
    for ks in range(32):
        a(f'ds_read_b128 v[{128+4*ks}:{131+4*ks}], v{16+(ks&7)} offset:{(ks>>3)*256}')
    a('v_lshrrev_b32 v24, 4, v1'); a('v_and_b32 v25, 15, v1'); a('v_lshrrev_b32 v26, 2, v25')
    a('v_lshrrev_b32 v27, 1, v24'); a('v_lshl_add_u32 v27, v27, 3, v26'); a('v_lshlrev_b32 v27, 8, v27')
    a('s_lshl_b32 s20, s73, 1'); a('v_xor_b32 v26, s20, v26'); a('v_lshl_add_u32 v27, v26, 6, v27')
    a('v_and_b32 v24, 1, v24'); a('v_lshl_add_u32 v27, v24, 5, v27')
    a('v_and_b32 v25, 3, v25'); a('v_lshl_add_u32 v27, v25, 3, v27')
    a('v_xor_b32 v28, 64, v27')
    a('s_or_b32 s20, s58, s73'); a('v_or_b32 v29, s20, v12'); a('v_cmp_eq_u32 vcc, 0, v29')
    a('v_mov_b32 v30, 0'); a('v_bfrev_b32 v31, 1'); a('v_cndmask_b32 v29, v30, v31, vcc')
    a('s_waitcnt lgkmcnt(0)'); a('s_barrier')
    RB=[131072,0,32768,65536,98304,131072,0,32768]
    for st in (1,2,3,4): dma(st,RB[st])
    def main(dft,tag):
        def reads(i):
            st,kk=i>>2,i&3; buf=32+16*(i&1)
            if kk==0:
                a(f'v_add_u32 v2, {RB[st]}, v27'); a(f'v_add_u32 v3, {RB[st]}, v28')
            for part in range(2):
                for t in range(2):
                    for half in range(2):
                        r=buf+8*part+4*t+2*half
                        a(f'ds_read_b64_tr_b16 v[{r}:{r+1}], v{2+t} offset:{part*16384+kk*4096+half*1024}')
        reads(0)
        for i in range(32):
            st,kk=i>>2,i&3; buf=32+16*(i&1)
            a('s_waitcnt lgkmcnt(0)')
            if kk==3 and st<7:
                n=[12,12,12,12,8,4,0][st]
                a(f's_waitcnt vmcnt({n})'); a('s_barrier')
            if i<31: reads(i+1)
            if kk==3 and st<=2: dma(st+5,RB[st+5])
            if dft:
                for q in range(4): a(f'v_xor_b32 v{buf+q}, v29, v{buf+q}')
            order=(1,2,3,0) if dft else (0,1,2,3)
            for f in order:
                acc=64+16*f; w=f'v[{buf+4*f}:{buf+4*f+3}]'; x=f'v[{128+4*i}:{131+4*i}]'
                c='0' if i==0 else f'v[{acc}:{acc+15}]'
                if dft: a(f'v_mfma_f32_32x32x16_bf16 v[{acc}:{acc+15}], {x}, {w}, {c}')
                else:   a(f'v_mfma_f32_32x32x16_bf16 v[{acc}:{acc+15}], {w}, {x}, {c}')
    a('s_cmp_eq_u32 s56, 1'); a('s_cbranch_scc1 K1_MAIN_DFT')
    main(False,'g')
    a('s_lshl_b32 s20, s5, 2'); a('s_add_u32 s20, s20, s72'); a('s_mul_i32 s20, s20, 114688')
    a('s_lshl_b32 s21, s6, 3'); a('s_lshl_b32 s22, s73, 2'); a('s_add_u32 s21, s21, s22'); a('s_lshl_b32 s21, s21, 10')
    a('s_add_u32 s20, s20, s21')
    a('s_nop 7'); a('s_nop 7')
    for t in range(2):
        g=64+16*t; u=96+16*t
        for r in range(16):
            a(f'v_max_f32 v{g+r}, 0, v{g+r}'); a(f'v_mul_f32 v{g+r}, v{g+r}, v{u+r}')
        for q in range(8): a(f'v_cvt_pk_bf16_f32 v{32+8*t+q}, v{g+2*q}, v{g+2*q+1}')
        a(f'buffer_store_dwordx4 v[{32+8*t}:{35+8*t}], v14, s[32:35], s20 offen offset:{2048*t}')
        a(f'buffer_store_dwordx4 v[{36+8*t}:{39+8*t}], v14, s[32:35], s20 offen offset:{2048*t+1024}')
    a('s_endpgm')
    a.lab('K1_MAIN_DFT')
    main(True,'d')
    a('s_lshr_b32 s20, s72, 1'); a('s_lshl_b32 s21, s20, 19')
    a('s_lshr_b32 s22, s58, 8'); a('s_lshl_b32 s22, s22, 2'); a('s_lshl_b32 s23, s73, 1'); a('s_add_u32 s22, s22, s23')
    a('s_lshl_b32 s23, s22, 16'); a('s_add_u32 s21, s21, s23')
    a('s_lshl_b32 s23, s5, 2'); a('s_and_b32 s24, s72, 1'); a('s_lshl_b32 s24, s24, 1'); a('s_add_u32 s23, s23, s24'); a('s_lshl_b32 s23, s23, 10')
    a('s_add_u32 s21, s21, s23'); a(f's_add_u32 s21, s21, {AF}'); a('s_add_u32 s25, s21, 65536')
    a('s_nop 7'); a('s_nop 7')
    a('s_lshl_b32 s24, s5, 2'); a('s_add_u32 s24, s24, s72'); a('s_cmp_eq_u32 s24, 2'); a('s_cbranch_scc0 K1_NO1024')
    a('s_lshl_b32 s24, s22, 7'); a(f's_add_u32 s24, s24, {A1024}')
    a('v_lshlrev_b32 v2, 2, v1'); a('v_cmp_gt_u32 vcc, 32, v1'); a('s_and_saveexec_b64 s[26:27], vcc')
    a('buffer_store_dword v64, v2, s[32:35], s24 offen'); a('buffer_store_dword v80, v2, s[32:35], s24 offen offset:128')
    a('s_mov_b64 exec, s[26:27]')
    a.lab('K1_NO1024')
    a('s_cmp_eq_u32 s20, 0'); a('s_cbranch_scc1 K1_EP_AE')
    for r in range(32): a(f'v_mov_b32 v{64+r}, v{96+r}')
    a.lab('K1_EP_AE')
    for t in range(2):
        g=64+16*t
        for q in range(8): a(f'v_cvt_pk_bf16_f32 v{32+8*t+q}, v{g+2*q}, v{g+2*q+1}')
        so='s21' if t==0 else 's25'
        a(f'buffer_store_dwordx4 v[{32+8*t}:{35+8*t}], v14, s[32:35], {so} offen')
        a(f'buffer_store_dwordx4 v[{36+8*t}:{39+8*t}], v14, s[32:35], {so} offen offset:1024')
    a.lab('K1_END')
    a('s_endpgm')
    return K,a.txt()
```

```python
from gen1 import *
def k2(NW=11):
    a=Asm()
    K='fnet_k2_kernel'
    a.l.append(f'.globl {K}\n.p2align 8\n.type {K},@function\n{K}:')
    a('s_cmp_ge_u32 s2, 256'); a('s_cbranch_scc1 K2_END')
    a('s_load_dwordx2 s[36:37], s[0:1], 0')
    a('s_load_dwordx2 s[38:39], s[0:1], 72')
    a('s_load_dwordx2 s[40:41], s[0:1], 88')
    a('s_and_b32 s3, s2, 7'); a('s_lshr_b32 s4, s2, 3')
    a('s_lshr_b32 s5, s3, 1'); a('s_lshl_b32 s5, s5, 3'); a('s_and_b32 s6, s4, 7'); a('s_add_u32 s5, s5, s6')
    a('s_and_b32 s6, s3, 1'); a('s_lshl_b32 s6, s6, 2'); a('s_lshr_b32 s7, s4, 3'); a('s_add_u32 s6, s6, s7')
    a('v_and_b32 v1, 63, v0'); a('v_lshrrev_b32 v2, 6, v0'); a('s_nop 0'); a('v_readfirstlane_b32 s7, v2')
    a('v_lshlrev_b32 v3, 4, v1')
    a('v_and_b32 v4, 31, v1'); a('v_lshrrev_b32 v5, 5, v1')
    a('s_mul_i32 s44, s5, 229376'); a('s_mul_i32 s20, s7, 28672'); a('s_add_u32 s44, s44, s20'); a('s_add_u32 s45, s44, 114688')
    a('s_mul_i32 s46, s6, 229376'); a('s_add_u32 s46, s46, s20'); a(f's_add_u32 s46, s46, {WF}'); a('s_add_u32 s47, s46, 114688')
    a('s_lshl_b32 s21, s7, 14')
    a('s_lshl_b32 s48, s5, 16'); a('s_add_u32 s48, s48, s21'); a(f's_add_u32 s48, s48, {CF}'); a(f's_add_u32 s50, s48, {32*65536}')
    a('s_lshl_b32 s49, s6, 16'); a('s_add_u32 s49, s49, s21'); a(f's_add_u32 s49, s49, {AF}'); a(f's_add_u32 s51, s49, {8*65536}')
    a('s_waitcnt lgkmcnt(0)')
    srd(a,8,40,WSZ); srd(a,12,36,2048*1024); srd(a,16,38,2048*1024)
    steps=[]; d=0; f=0
    for i in range(44):
        if f<16 and (d*16>=f*28+14 or d==28): steps.append(('f',f)); f+=1
        else: steps.append(('d',d)); d+=1
    left={}
    def loads(i):
        kind,k=steps[i]; base=64+16*(i%NW)
        regs=(44,45,46,47) if kind=='d' else (48,49,50,51)
        for q,sr in enumerate(regs):
            a(f'buffer_load_dwordx4 v[{base+4*q}:{base+4*q+3}], v3, s[8:11], s{sr} offen offset:{(k&3)*1024}')
        if (k&3)==3:
            for sr in regs: a(f's_add_u32 s{sr}, s{sr}, 4096')
    for i in range(NW): loads(i)
    a('s_lshr_b32 s22, s7, 1'); a('s_and_b32 s23, s7, 1')
    a('s_lshl_b32 s24, s5, 5'); a('v_lshl_add_u32 v6, v5, 2, s24')
    a('s_lshl_b32 s24, s6, 5'); a('v_add_u32 v7, s24, v4')
    a('s_cmp_eq_u32 s23, 0'); a('s_cbranch_scc1 K2_COLA')
    a('v_sub_u32 v7, 0x200, v7'); a('v_cmp_eq_u32 vcc, 0x200, v7'); a('v_mov_b32 v8, 0x100'); a('s_nop 0'); a('v_cndmask_b32 v7, v7, v8, vcc')
    a.lab('K2_COLA')
    a('s_mov_b32 s25, 1024')
    a('s_cmp_eq_u32 s22, 0'); a('s_cbranch_scc1 K2_ROWA')
    a('v_sub_u32 v6, 0x800, v6'); a('s_mov_b32 s25, -1024')
    a.lab('K2_ROWA')
    a('v_lshlrev_b32 v6, 10, v6'); a('v_lshl_add_u32 v6, v7, 1, v6')
    for r in range(16):
        a(f'v_mov_b32 v8, {8*(r>>2)+(r&3)}'); a(f'v_mad_i32_i24 v{16+r}, v8, s25, v6')
    a('v_cmp_le_u32 vcc, 0x200000, v16'); a('v_subrev_u32 v8, 0x100000, v16'); a('s_nop 0'); a('v_cndmask_b32 v16, v16, v8, vcc')
    a('s_mov_b64 s[30:31], vcc')
    for r in range(16): a(f'buffer_load_ushort v{32+r}, v{16+r}, s[12:15], 0 offen')
    a('s_lshl_b32 s24, s6, 7'); a(f's_add_u32 s24, s24, {A1024}'); a('v_lshlrev_b32 v8, 2, v4')
    a('buffer_load_dword v9, v8, s[8:11], s24 offen')
    a('v_mov_b32 v12, 0xbf803f80'); a('v_mov_b32 v13, v12'); a('v_mov_b32 v14, v12'); a('v_mov_b32 v15, v12')
    extra=17
    first={}
    def mf(acc,x,y):
        c=f'a[{acc}:{acc+15}]' if acc in first else '0'
        first[acc]=1
        a(f'v_mfma_f32_32x32x16_bf16 a[{acc}:{acc+15}], v[{x}:{x+3}], v[{y}:{y+3}], {c}')
    for i in range(44):
        kind,k=steps[i]; base=64+16*(i%NW)
        later=min(NW-1,43-i)*4
        if i<NW: later+=extra if True else 0
        n=later
        a(f's_waitcnt vmcnt({min(n,63)})')
        if kind=='d':
            mf(0,base,base+8); mf(16,base,base+12); mf(32,base+4,base+8); mf(48,base+4,base+12)
        else:
            mf(64,base,base+4); mf(80,base+8,base+12); mf(96,12,base+4)
        if i+NW<44: loads(i+NW)
    a('s_nop 7'); a('s_nop 7')
    for r in range(16):
        a(f'v_accvgpr_read_b32 v{64+r}, a{64+r}'); a(f'v_accvgpr_read_b32 v{96+r}, a{80+r}')
        a(f'v_add_f32 v{80+r}, v{64+r}, v{96+r}'); a(f'v_sub_f32 v{64+r}, v{64+r}, v{96+r}')
    a('s_mul_i32 s26, s7, 24832'); a('v_add_u32 v10, s26, v3')
    for t in range(4):
        for q in range(4): a(f'ds_write_b128 v10, a[{16*t+4*q}:{16*t+4*q+3}] offset:{t*4096+q*1024}')
    for t in range(2):
        for q in range(4): a(f'ds_write_b128 v10, v[{64+16*t+4*q}:{64+16*t+4*q+3}] offset:{(4+t)*4096+q*1024}')
    a('v_lshlrev_b32 v11, 2, v1'); a('v_add_u32 v11, s26, v11'); a('v_accvgpr_read_b32 v8, a96')
    a('ds_write_b32 v11, v8 offset:24576')
    a('s_waitcnt lgkmcnt(0)'); a('s_barrier')
    a('s_lshl_b32 s27, s7, 12'); a('v_add_u32 v10, s27, v3')
    a('s_xor_b32 s27, s22, s23'); a('s_add_u32 s27, s27, 4'); a('s_lshl_b32 s27, s27, 12'); a('v_add_u32 v11, s27, v3')
    a('v_add_u32 v6, 49664, v10'); a('v_add_u32 v7, 49664, v11')
    for sw in range(4):
        rb=10 if sw<2 else 6; ry=11 if sw<2 else 7; o=(sw&1)*24832
        for q in range(4): a(f'ds_read_b128 v[{64+16*sw+4*q}:{67+16*sw+4*q}], v{rb} offset:{o+q*1024}')
        for q in range(4): a(f'ds_read_b128 v[{128+16*sw+4*q}:{131+16*sw+4*q}], v{ry} offset:{o+q*1024}')
    a('v_lshlrev_b32 v8, 2, v4'); a('v_add_u32 v2, 49664, v8')
    a('ds_read_b32 v48, v8 offset:24576'); a(f'ds_read_b32 v49, v8 offset:{24576+24832}')
    a('ds_read_b32 v50, v2 offset:24576'); a(f'ds_read_b32 v51, v2 offset:{24576+24832}')
    a('s_waitcnt lgkmcnt(0)')
    for r in range(16):
        a(f'v_add_f32 v{64+r}, v{64+r}, v{80+r}'); a(f'v_add_f32 v{96+r}, v{96+r}, v{112+r}')
        a(f'v_add_f32 v{128+r}, v{128+r}, v{144+r}'); a(f'v_add_f32 v{160+r}, v{160+r}, v{176+r}')
        a(f'v_add_f32 v{64+r}, v{64+r}, v{96+r}'); a(f'v_add_f32 v{128+r}, v{128+r}, v{160+r}')
        if r&1: a(f'v_sub_f32 v{128+r}, v{128+r}, v9')
        else:   a(f'v_add_f32 v{128+r}, v{128+r}, v9')
    a('v_add_f32 v48, v48, v49'); a('v_add_f32 v50, v50, v51'); a('v_add_f32 v48, v48, v50'); a('v_add_f32 v48, v48, v9')
    a('v_cndmask_b32 v128, v128, v48, s[30:31]')
    a('s_or_b32 s27, s6, s23'); a('v_or_b32 v8, s27, v4'); a('v_cmp_eq_u32 vcc, 0, v8'); a('v_mov_b32 v2, 0'); a('s_nop 0')
    for r in range(16): a(f'v_cndmask_b32 v{128+r}, v{128+r}, v2, vcc')
    a('s_mov_b32 s28, 0xbfb8aa3b')
    for r in range(16): a(f'v_mul_f32 v{96+r}, s28, v{64+r}')
    for r in range(16): a(f'v_exp_f32 v{96+r}, v{96+r}')
    for r in range(16): a(f'v_add_f32 v{96+r}, 1.0, v{96+r}')
    for r in range(16): a(f'v_rcp_f32 v{96+r}, v{96+r}')
    for r in range(16): a(f'v_mul_f32 v{64+r}, v{64+r}, v{128+r}')
    for r in range(16): a(f'v_lshlrev_b32 v{32+r}, 16, v{32+r}')
    for r in range(16): a(f'v_fma_f32 v{64+r}, v{64+r}, v{96+r}, v{32+r}')
    for r in range(16): a(f'v_cvt_pk_bf16_f32 v{64+r}, v{64+r}, v{64+r}')
    for r in range(16): a(f'buffer_store_short v{64+r}, v{16+r}, s[16:19], 0 offen')
    a.lab('K2_END')
    a('s_endpgm')
    return K,a.txt()
```

```python
import sys
sys.path.insert(0,'gen')
import importlib, gen1, gen2
NAME='recurrent_scan__spectral_fnet__glu_gated_reglu__prompt'
def desc(K,nv,acc,ns=102):
    return f""".p2align 6
.amdhsa_kernel {K}
  .amdhsa_next_free_vgpr {nv}
  .amdhsa_next_free_sgpr {ns}
  .amdhsa_accum_offset {acc}
  .amdhsa_group_segment_fixed_size 0
  .amdhsa_kernarg_size 96
  .amdhsa_user_sgpr_count 2
  .amdhsa_user_sgpr_kernarg_segment_ptr 1
  .amdhsa_system_sgpr_workgroup_id_x 1
.end_amdhsa_kernel
"""
def build(out,k1t,k2t,l1=163840,l2=99328,b2=256,nv2=368,acc2=256):
    ref=open(f'cdna_kernels/{NAME}.s.ref').read().splitlines()
    hdr=[l for l in ref if l.startswith(';') and '@launch' not in l and 'Override' not in l and 'grid=ceil' not in l]
    K1,t1=k1t; K2,t2=k2t
    s='\n'.join(hdr)+'\n'
    s+=f'; @launch kernel={K1} grid=(256,1,1) block=(512,1,1) lds={l1}\n'
    s+=f'; @launch kernel={K2} grid=(256,1,1) block=({b2},1,1) lds={l2}\n'
    s+='.amdgcn_target "amdgcn-amd-amdhsa--gfx950"\n.text\n'+t1+t2
    s+='.section .rodata,"a"\n'+desc(K1,256,256)+desc(K2,nv2,acc2)
    open(out,'w').write(s)
if __name__=='__main__':
    out=sys.argv[1] if len(sys.argv)>1 else f'cdna_kernels/{NAME}.s'
    if len(sys.argv)>2: gen1.STAMP=int(sys.argv[2])
    build(out,gen1.k1(SC=' sc0 sc1'),gen2.k2(MAP=1))
```

```python
HF=0; WF=0x700000; CF=0x8C0000; AF=0xCC0000; A1024=0xDC0000; WSZ=0xDC0400
STAMP=None
class Asm:
    def __init__(s): s.l=[]; s.ns=0
    def stamp(s):
        if STAMP is None: return
        s(f's_memtime s[{74+2*s.ns}:{75+2*s.ns}]'); s.ns+=1
    def stamp_out(s,k):
        if STAMP is None: return
        s.uid=getattr(s,'uid',0)+1
        L=f'ST_{k}_{s.uid}'
        s('s_waitcnt lgkmcnt(0)')
        s(f's_cmp_eq_u32 s2, {STAMP}'); s(f's_cbranch_scc0 {L}')
        s('v_cmp_eq_u32 vcc, 0, v0'); s('s_and_saveexec_b64 s[4:5], vcc'); s(f's_cbranch_execz {L}')
        s('s_load_dwordx2 s[6:7], s[0:1], 80'); s('s_waitcnt lgkmcnt(0)')
        s(f'v_mov_b32 v2, {128*k}')
        for i in range(s.ns):
            s(f'v_mov_b32 v4, s{74+2*i}'); s(f'v_mov_b32 v5, s{75+2*i}')
            s(f'global_store_dwordx2 v2, v[4:5], s[6:7] offset:{8*i}')
        s.lab(L)
    def __call__(s,x): s.l.append('    '+x)
    def lab(s,x): s.l.append(x+':')
    def txt(s): return '\n'.join(s.l)+'\n'

def srd(a,reg,ptr,size):
    a(f's_mov_b32 s{reg}, s{ptr}'); a(f's_and_b32 s{reg+1}, s{ptr+1}, 0xffff')
    a(f's_mov_b32 s{reg+2}, {hex(size)}'); a(f's_mov_b32 s{reg+3}, 0x20000')

def mirror_row(a,dst,tmp):
    a(f'v_sub_u32 v{dst}, 0x800, v{dst}')
    a(f'v_cmp_eq_u32 vcc, 0x800, v{dst}')
    a(f'v_mov_b32 v{tmp}, 0x400'); a('s_nop 0')
    a(f'v_cndmask_b32 v{dst}, v{dst}, v{tmp}, vcc')

def k1():
    a=Asm()
    K='fnet_k1_kernel'
    a.l.append(f'.globl {K}\n.p2align 8\n.type {K},@function\n{K}:')
    a('s_cmp_ge_u32 s2, 256'); a('s_cbranch_scc1 K1_END')
    a.stamp()
    a('s_load_dwordx4 s[36:39], s[0:1], 0')
    a('s_load_dwordx4 s[40:43], s[0:1], 16')
    a('s_load_dwordx2 s[44:45], s[0:1], 32')
    a('s_load_dwordx4 s[48:51], s[0:1], 48')
    a('s_load_dwordx2 s[52:53], s[0:1], 64')
    a('s_load_dwordx2 s[54:55], s[0:1], 88')
    a('s_and_b32 s3, s2, 7'); a('s_lshr_b32 s4, s2, 3')
    a('s_and_b32 s5, s3, 1'); a('s_lshl_b32 s5, s5, 3'); a('s_and_b32 s6, s4, 7'); a('s_add_u32 s5, s5, s6')
    a('s_lshr_b32 s6, s3, 1'); a('s_lshl_b32 s6, s6, 2'); a('s_lshr_b32 s7, s4, 3'); a('s_add_u32 s6, s6, s7')
    a('v_and_b32 v1, 63, v0')
    a('v_lshrrev_b32 v2, 6, v0')
    a('s_nop 0')
    a('v_readfirstlane_b32 s7, v2')
    a('s_cmp_ge_u32 s6, 14'); a('s_cselect_b32 s56, 1, 0')
    a('v_lshrrev_b32 v3, 3, v1')
    a('v_and_b32 v4, 7, v1')
    a('s_cmp_eq_u32 s56, 1'); a('s_cbranch_scc1 K1_ROWS_DFT')
    a('s_lshr_b32 s8, s7, 1'); a('s_lshl_b32 s9, s5, 2'); a('s_add_u32 s8, s8, s9')
    a('s_and_b32 s9, s7, 1'); a('s_lshl_b32 s9, s9, 4')
    a('s_lshr_b32 s10, s8, 1'); a('s_lshl_b32 s10, s10, 5'); a('s_add_u32 s9, s9, s10')
    a('v_add_u32 v5, s9, v3'); a('v_add_u32 v6, 8, v5')
    a('s_and_b32 s8, s8, 1'); a('s_cmp_eq_u32 s8, 0'); a('s_cbranch_scc1 K1_ROWS_A')
    mirror_row(a,5,7); mirror_row(a,6,7)
    a.lab('K1_ROWS_A')
    a('s_lshl_b32 s9, s7, 4'); a('v_add_u32 v7, s9, v3'); a('v_add_u32 v8, 8, v7')
    a('s_branch K1_ROWS_DONE')
    a.lab('K1_ROWS_DFT')
    a('s_lshl_b32 s9, s5, 6'); a('s_lshl_b32 s10, s7, 3'); a('s_add_u32 s9, s9, s10')
    a('v_add_u32 v5, s9, v3'); a('v_mov_b32 v6, v5')
    mirror_row(a,6,7)
    a('v_add_u32 v7, s10, v3'); a('v_add_u32 v8, 64, v7')
    a.lab('K1_ROWS_DONE')
    a('v_lshlrev_b32 v9, 4, v4')
    a('v_lshl_add_u32 v5, v5, 10, v9'); a('v_lshl_add_u32 v6, v6, 10, v9')
    for R in (7,8):
        a(f'v_and_b32 v10, 15, v{R}'); a('v_xor_b32 v10, v10, v4'); a('v_lshlrev_b32 v10, 4, v10')
        a(f'v_lshl_add_u32 v{R}, v{R}, 10, v10')
    a('s_waitcnt lgkmcnt(0)')
    srd(a,8,36,2048*1024)
    srd(a,32,54,WSZ)
    for jj in range(8): a(f'buffer_load_dwordx4 v[{64+4*jj}:{67+4*jj}], v5, s[8:11], 0 offen offset:{128*jj}')
    for jj in range(8): a(f'buffer_load_dwordx4 v[{96+4*jj}:{99+4*jj}], v6, s[8:11], 0 offen offset:{128*jj}')
    a('s_cmp_eq_u32 s56, 1')
    a('s_cselect_b32 s48, s42, s48'); a('s_cselect_b32 s49, s43, s49')
    a('s_cselect_b32 s50, s44, s50'); a('s_cselect_b32 s51, s45, s51')
    a('s_mov_b32 s57, 3584'); a('s_mov_b32 s59, 0x1C0000')
    a('s_cselect_b32 s57, 1024, s57')
    a('s_cselect_b32 s59, 0x80000, s59')
    srd(a,12,48,0); srd(a,16,50,0)
    a('s_mov_b32 s14, s59'); a('s_mov_b32 s18, s59')
    a('s_sub_u32 s58, s6, 14'); a('s_cmp_eq_u32 s56, 1'); a('s_cselect_b32 s58, s58, s6'); a('s_lshl_b32 s58, s58, 8')
    a('v_lshrrev_b32 v10, 4, v1'); a('s_lshl_b32 s20, s7, 3'); a('v_add_u32 v11, s20, v10')
    a('v_mul_lo_u32 v11, v11, s57')
    a('v_lshlrev_b32 v10, 2, v10'); a('v_and_b32 v12, 15, v1'); a('v_xor_b32 v10, v10, v12')
    a('v_lshl_add_u32 v11, v10, 4, v11'); a('v_add_u32 v11, s58, v11')
    a('s_lshl_b32 s60, s57, 2')
    a('s_lshl_b32 s61, s57, 6')
    a('s_lshl_b32 s62, s7, 11')
    def dma(stage,rb):
        a(f's_mul_i32 s63, s61, {stage}'); a('s_add_u32 s64, s63, s60')
        for part,sr in ((0,12),(1,16)):
            for q in range(2):
                a(f's_add_u32 m0, s62, {rb+part*16384+q*1024}')
                a('s_nop 0')
                a(f'buffer_load_dwordx4 v11, s[{sr}:{sr+3}], s{63+q} offen lds')
    dma(0,131072)
    a('v_lshrrev_b32 v10, 1, v0'); a('v_add_u32 v10, 64, v10'); a('v_mul_lo_u32 v10, v10, s57')
    a('v_and_b32 v12, 1, v0'); a('v_lshl_add_u32 v10, v12, 7, v10'); a('v_add_u32 v10, s58, v10')
    a('s_lshl_b32 s63, s57, 8')
    for sr in (12,16):
        a(f'buffer_load_dword v63, v10, s[{sr}:{sr+3}], 0 offen'); a(f'buffer_load_dword v63, v10, s[{sr}:{sr+3}], s63 offen')
    a('v_and_b32 v12, 31, v1'); a('v_lshrrev_b32 v13, 5, v1')
    a('s_mov_b32 s67, 0x3f803f80')
    a('v_mov_b32 v16, 0'); a('v_mov_b32 v17, 0'); a('v_mov_b32 v18, 0'); a('v_mov_b32 v19, 0')
    a('s_waitcnt vmcnt(16)')
    for d in range(32):
        a(f'v_dot2_f32_bf16 v16, v{64+d}, s67, v16'); a(f'v_dot2_f32_bf16 v17, v{64+d}, v{64+d}, v17')
    a('s_waitcnt vmcnt(8)')
    a.stamp()
    for d in range(32):
        a(f'v_dot2_f32_bf16 v18, v{96+d}, s67, v18'); a(f'v_dot2_f32_bf16 v19, v{96+d}, v{96+d}, v19')
    a('s_nop 3')
    for ctl in ('quad_perm:[1,0,3,2]','quad_perm:[2,3,0,1]','row_half_mirror'):
        for r in (16,17,18,19):
            a(f'v_add_f32_dpp v{r}, v{r}, v{r} {ctl} row_mask:0xf bank_mask:0xf')
        a('s_nop 1')
    a('s_mov_b32 s68, 0x3b000000')
    a('s_mov_b32 s69, 0x3727c5ac')
    for (sm,sq,rr,mm) in ((16,17,20,22),(18,19,24,26)):
        a(f'v_mul_f32 v{sm}, s68, v{sm}')
        a(f'v_mul_f32 v{sq}, s68, v{sq}')
        a(f'v_fma_f32 v{sq}, -v{sm}, v{sm}, v{sq}')
        a(f'v_max_f32 v{sq}, 0, v{sq}')
        a(f'v_add_f32 v{sq}, s69, v{sq}')
        a(f'v_rsq_f32 v{rr}, v{sq}')
        a('s_nop 0')
        a(f'v_mul_f32 v{mm}, v{sm}, v{rr}')
        a(f'v_sub_f32 v{mm}, 0, v{mm}')
    a('s_mov_b32 s70, 0xffff0000')
    a('v_xor_b32 v28, 128, v7'); a('v_xor_b32 v29, 128, v8')
    a('s_cmp_eq_u32 s56, 1'); a('s_cbranch_scc1 K1_NORM_DFT')
    def unpack(dst,src):
        a(f'v_lshlrev_b32 v{dst}, 16, v{src}'); a(f'v_and_b32 v{dst+1}, s70, v{src}')
    def wr(jj):
        for (base,ae,ao) in ((64,7,28),(96,8,29)):
            ad=ao if jj&1 else ae
            a(f'ds_write_b128 v{ad}, v[{base+4*jj}:{base+3+4*jj}] offset:{(jj>>1)*256}')
    for jj in range(8):
        for (base,rr,mm) in ((64,20,22),(96,24,26)):
            for d in range(4):
                t=44+4*(d&1)
                s=base+4*jj+d
                unpack(t,s)
                a(f'v_pk_fma_f32 v[{t}:{t+1}], v[{t}:{t+1}], v[{rr}:{rr+1}], v[{mm}:{mm+1}] op_sel_hi:[1,0,0]')
                a(f'v_cvt_pk_bf16_f32 v{s}, v{t}, v{t+1}')
        wr(jj)
    a('s_branch K1_NORM_DONE')
    a.lab('K1_NORM_DFT')
    a('s_lshl_b32 s71, s5, 3'); a('s_add_u32 s71, s71, s7')
    a('v_or_b32 v30, s71, v3'); a('v_cmp_eq_u32 vcc, 0, v30')
    a('v_mov_b32 v30, 1.0'); a('v_mov_b32 v31, -1.0')
    a('v_cndmask_b32 v52, v30, 0, vcc') if False else None
    a('v_mov_b32 v53, 0')
    a('v_cndmask_b32 v52, v30, v53, vcc')
    a('v_cndmask_b32 v54, v30, v53, vcc')
    a('v_cndmask_b32 v40, v31, v30, vcc')
    for jj in range(8):
        for d in range(4):
            s1=64+4*jj+d; s2=96+4*jj+d
            unpack(44,s1); unpack(46,s2)
            a('v_pk_fma_f32 v[44:45], v[44:45], v[20:21], v[22:23] op_sel_hi:[1,0,0]')
            a('v_pk_fma_f32 v[46:47], v[46:47], v[24:25], v[26:27] op_sel_hi:[1,0,0]')
            a('v_pk_fma_f32 v[48:49], v[46:47], v[52:53], v[44:45] op_sel_hi:[1,0,1]')
            a('v_pk_mul_f32 v[50:51], v[46:47], v[40:41] op_sel_hi:[1,0]')
            a('v_pk_fma_f32 v[50:51], v[44:45], v[54:55], v[50:51] op_sel_hi:[1,0,1]')
            a(f'v_cvt_pk_bf16_f32 v{s1}, v48, v49'); a(f'v_cvt_pk_bf16_f32 v{s2}, v50, v51')
        wr(jj)
    a.lab('K1_NORM_DONE')
    a.stamp()
    a('v_lshlrev_b32 v14, 4, v1')
    a('s_waitcnt vmcnt(4)')
    a('s_and_b32 s72, s7, 3'); a('s_lshr_b32 s73, s7, 2')
    a('s_lshl_b32 s20, s72, 5'); a('v_add_u32 v15, s20, v12')
    a('v_and_b32 v16, 15, v15'); a('v_xor_b32 v16, v16, v13'); a('v_lshlrev_b32 v16, 4, v16')
    a('v_lshl_add_u32 v15, v15, 10, v16')
    for m in range(8): a(f'v_xor_b32 v{16+m}, {32*m}, v15')
    a('s_waitcnt lgkmcnt(0)'); a('s_barrier')
    for ks in range(32):
        a(f'ds_read_b128 v[{128+4*ks}:{131+4*ks}], v{16+(ks&7)} offset:{(ks>>3)*256}')
    a('v_lshrrev_b32 v24, 4, v1'); a('v_and_b32 v25, 15, v1'); a('v_lshrrev_b32 v26, 2, v25')
    a('v_lshrrev_b32 v27, 1, v24'); a('v_lshl_add_u32 v27, v27, 3, v26'); a('v_lshlrev_b32 v27, 8, v27')
    a('s_lshl_b32 s20, s73, 1'); a('v_xor_b32 v26, s20, v26'); a('v_lshl_add_u32 v27, v26, 6, v27')
    a('v_and_b32 v24, 1, v24'); a('v_lshl_add_u32 v27, v24, 5, v27')
    a('v_and_b32 v25, 3, v25'); a('v_lshl_add_u32 v27, v25, 3, v27')
    a('v_xor_b32 v28, 64, v27')
    a('s_or_b32 s20, s58, s73'); a('v_or_b32 v29, s20, v12'); a('v_cmp_eq_u32 vcc, 0, v29')
    a('v_mov_b32 v30, 0'); a('v_bfrev_b32 v31, 1'); a('v_cndmask_b32 v29, v30, v31, vcc')
    a('s_waitcnt lgkmcnt(0)'); a('s_barrier')
    a.stamp()
    RB=[131072,0,32768,65536,98304,131072,0,32768]
    for st in (1,2,3,4): dma(st,RB[st])
    srd(a,20+4,52,1792*1024)
    a('s_min_u32 s28, s2, 223'); a('s_mul_i32 s29, s28, 4682'); a('s_lshr_b32 s29, s29, 16')
    a('s_mul_i32 s30, s29, 14'); a('s_sub_u32 s30, s28, s30'); a('s_lshl_b32 s30, s30, 3'); a('s_add_u32 s30, s30, s7')
    a('s_lshr_b32 s31, s29, 1'); a('s_lshl_b32 s31, s31, 5')
    a('v_add_u32 v24, s31, v12')
    a('s_and_b32 s31, s29, 1'); a('s_cmp_eq_u32 s31, 0'); a('s_cbranch_scc1 K1_WD_A')
    a('v_sub_u32 v24, 0x200, v24'); a('v_cmp_eq_u32 vcc, 0x200, v24'); a('v_mov_b32 v25, 0x100'); a('s_nop 0'); a('v_cndmask_b32 v24, v24, v25, vcc')
    a.lab('K1_WD_A')
    a('v_lshlrev_b32 v24, 1, v24'); a('v_lshl_add_u32 v24, v13, 12, v24')
    a('s_lshl_b32 s31, s30, 14'); a('s_add_u32 s66, s31, 8192')
    for g,so in ((0,'s31'),(1,'s66')):
        for i in range(4):
            a(f'buffer_load_ushort v{16+4*g+i}, v24, s[24:27], {so} offen offset:{1024*i}')
    a('s_lshl_b32 s66, s28, 3'); a('s_add_u32 s66, s66, s7'); a('s_lshl_b32 s66, s66, 10'); a(f's_add_u32 s66, s66, {WF}')
    def main(dft,tag):
        def reads(i):
            st,kk=i>>2,i&3; buf=32+16*(i&1)
            if kk==0:
                a(f'v_add_u32 v2, {RB[st]}, v27'); a(f'v_add_u32 v3, {RB[st]}, v28')
            for part in range(2):
                for t in range(2):
                    for half in range(2):
                        r=buf+8*part+4*t+2*half
                        a(f'ds_read_b64_tr_b16 v[{r}:{r+1}], v{2+t} offset:{part*16384+kk*4096+half*1024}')
        reads(0)
        for i in range(32):
            st,kk=i>>2,i&3; buf=32+16*(i&1)
            a('s_waitcnt lgkmcnt(0)')
            if kk==3 and st<7:
                n=[20,20,20,20,8,4,0][st]
                a(f's_waitcnt vmcnt({n})'); a('s_barrier')
            if i in (4,16,31) and not dft: a.stamp()
            if i<31: reads(i+1)
            if kk==3 and st<=2: dma(st+5,RB[st+5])
            if i==20:
                for q in range(4): a(f'v_lshl_or_b32 v{4+q}, v{17+2*q}, 16, v{16+2*q}')
                a('s_cmp_ge_u32 s2, 224'); a(f's_cbranch_scc1 K1_NOWD_{tag}')
                a('buffer_store_dwordx4 v[4:7], v14, s[32:35], s66 offen')
                a.lab(f'K1_NOWD_{tag}')
            if dft:
                for q in range(4): a(f'v_xor_b32 v{buf+q}, v29, v{buf+q}')
            order=(1,2,3,0) if dft else (0,1,2,3)
            for f in order:
                acc=64+16*f; w=f'v[{buf+4*f}:{buf+4*f+3}]'; x=f'v[{128+4*i}:{131+4*i}]'
                c='0' if i==0 else f'v[{acc}:{acc+15}]'
                if dft: a(f'v_mfma_f32_32x32x16_bf16 v[{acc}:{acc+15}], {x}, {w}, {c}')
                else:   a(f'v_mfma_f32_32x32x16_bf16 v[{acc}:{acc+15}], {w}, {x}, {c}')
    a('s_cmp_eq_u32 s56, 1'); a('s_cbranch_scc1 K1_MAIN_DFT')
    main(False,'g')
    a('s_lshl_b32 s20, s5, 2'); a('s_add_u32 s20, s20, s72'); a('s_mul_i32 s20, s20, 114688')
    a('s_lshl_b32 s21, s6, 3'); a('s_lshl_b32 s22, s73, 2'); a('s_add_u32 s21, s21, s22'); a('s_lshl_b32 s21, s21, 10')
    a('s_add_u32 s20, s20, s21')
    a('s_nop 7'); a('s_nop 7')
    for t in range(2):
        g=64+16*t; u=96+16*t
        for r in range(16):
            a(f'v_max_f32 v{g+r}, 0, v{g+r}'); a(f'v_mul_f32 v{g+r}, v{g+r}, v{u+r}')
        for q in range(8): a(f'v_cvt_pk_bf16_f32 v{32+8*t+q}, v{g+2*q}, v{g+2*q+1}')
        a(f'buffer_store_dwordx4 v[{32+8*t}:{35+8*t}], v14, s[32:35], s20 offen offset:{2048*t}')
        a(f'buffer_store_dwordx4 v[{36+8*t}:{39+8*t}], v14, s[32:35], s20 offen offset:{2048*t+1024}')
    a.stamp(); a('s_waitcnt vmcnt(0)'); a.stamp(); a.stamp_out(0)
    a('s_endpgm')
    a.lab('K1_MAIN_DFT')
    main(True,'d')
    a('s_lshr_b32 s20, s72, 1'); a('s_lshl_b32 s21, s20, 19')
    a('s_lshr_b32 s22, s58, 8'); a('s_lshl_b32 s22, s22, 2'); a('s_lshl_b32 s23, s73, 1'); a('s_add_u32 s22, s22, s23')
    a('s_lshl_b32 s23, s22, 16'); a('s_add_u32 s21, s21, s23')
    a('s_lshl_b32 s23, s5, 2'); a('s_and_b32 s24, s72, 1'); a('s_lshl_b32 s24, s24, 1'); a('s_add_u32 s23, s23, s24'); a('s_lshl_b32 s23, s23, 10')
    a('s_add_u32 s21, s21, s23'); a(f's_add_u32 s21, s21, {AF}'); a('s_add_u32 s25, s21, 65536')
    a('s_nop 7'); a('s_nop 7')
    a('s_lshl_b32 s24, s5, 2'); a('s_add_u32 s24, s24, s72'); a('s_cmp_eq_u32 s24, 2'); a('s_cbranch_scc0 K1_NO1024')
    a('s_lshl_b32 s24, s22, 7'); a(f's_add_u32 s24, s24, {A1024}')
    a('v_lshlrev_b32 v2, 2, v1'); a('v_cmp_gt_u32 vcc, 32, v1'); a('s_and_saveexec_b64 s[26:27], vcc')
    a('buffer_store_dword v64, v2, s[32:35], s24 offen'); a('buffer_store_dword v80, v2, s[32:35], s24 offen offset:128')
    a('s_mov_b64 exec, s[26:27]')
    a.lab('K1_NO1024')
    a('s_cmp_eq_u32 s20, 0'); a('s_cbranch_scc1 K1_EP_AE')
    for r in range(32): a(f'v_mov_b32 v{64+r}, v{96+r}')
    a.lab('K1_EP_AE')
    for t in range(2):
        g=64+16*t
        for q in range(8): a(f'v_cvt_pk_bf16_f32 v{32+8*t+q}, v{g+2*q}, v{g+2*q+1}')
        so='s21' if t==0 else 's25'
        a(f'buffer_store_dwordx4 v[{32+8*t}:{35+8*t}], v14, s[32:35], {so} offen')
        a(f'buffer_store_dwordx4 v[{36+8*t}:{39+8*t}], v14, s[32:35], {so} offen offset:1024')
    a.lab('K1_END')
    a('s_endpgm')
    return K,a.txt()
```

```python
from gen1 import *
import gen1
def STAMPON(): return gen1.STAMP is not None
def k2(NW=12):
    a=Asm()
    K='fnet_k2_kernel'
    a.l.append(f'.globl {K}\n.p2align 8\n.type {K},@function\n{K}:')
    a('s_cmp_ge_u32 s2, 256'); a('s_cbranch_scc1 K2_END')
    a.stamp()
    a('s_load_dwordx2 s[36:37], s[0:1], 0')
    a('s_load_dwordx2 s[38:39], s[0:1], 72')
    a('s_load_dwordx2 s[40:41], s[0:1], 88')
    a('s_and_b32 s3, s2, 7'); a('s_lshr_b32 s4, s2, 3')
    a('s_lshr_b32 s5, s3, 1'); a('s_lshl_b32 s5, s5, 3'); a('s_and_b32 s6, s4, 7'); a('s_add_u32 s5, s5, s6')
    a('s_and_b32 s6, s3, 1'); a('s_lshl_b32 s6, s6, 2'); a('s_lshr_b32 s7, s4, 3'); a('s_add_u32 s6, s6, s7')
    a('v_and_b32 v1, 63, v0'); a('v_lshrrev_b32 v2, 6, v0'); a('s_nop 0'); a('v_readfirstlane_b32 s7, v2')
    a('v_lshlrev_b32 v3, 4, v1')
    a('v_and_b32 v4, 31, v1'); a('v_lshrrev_b32 v5, 5, v1')
    a('s_mul_i32 s44, s5, 229376'); a('s_mul_i32 s20, s7, 28672'); a('s_add_u32 s44, s44, s20'); a('s_add_u32 s45, s44, 114688')
    a('s_mul_i32 s46, s6, 229376'); a('s_add_u32 s46, s46, s20'); a(f's_add_u32 s46, s46, {WF}'); a('s_add_u32 s47, s46, 114688')
    a('s_lshl_b32 s21, s7, 14')
    a('s_lshl_b32 s49, s6, 16'); a('s_add_u32 s49, s49, s21'); a(f's_add_u32 s49, s49, {AF}'); a(f's_add_u32 s51, s49, {8*65536}')
    a('s_waitcnt lgkmcnt(0)')
    srd(a,8,40,WSZ); srd(a,12,36,2048*1024); srd(a,16,38,2048*1024)
    steps=[]; d=0; f=0
    for i in range(44):
        if f<16 and (d*16>=f*28+14 or d==28): steps.append(('f',f)); f+=1
        else: steps.append(('d',d)); d+=1
    left={}
    def loads(i):
        kind,k=steps[i]; base=64+16*(i%NW)
        regs=(44,45,46,47) if kind=='d' else (49,51)
        for q,sr in enumerate(regs):
            a(f'buffer_load_dwordx4 v[{base+4*q}:{base+4*q+3}], v3, s[8:11], s{sr} offen offset:{(k&3)*1024}')
        if (k&3)==3:
            for sr in regs: a(f's_add_u32 s{sr}, s{sr}, 4096')
    for i in range(NW): loads(i)
    a('s_lshr_b32 s22, s7, 1'); a('s_and_b32 s23, s7, 1')
    a('s_lshl_b32 s24, s5, 5'); a('v_lshl_add_u32 v6, v5, 2, s24')
    a('s_lshl_b32 s24, s6, 5'); a('v_add_u32 v7, s24, v4')
    a('s_cmp_eq_u32 s23, 0'); a('s_cbranch_scc1 K2_COLA')
    a('v_sub_u32 v7, 0x200, v7'); a('v_cmp_eq_u32 vcc, 0x200, v7'); a('v_mov_b32 v8, 0x100'); a('s_nop 0'); a('v_cndmask_b32 v7, v7, v8, vcc')
    a.lab('K2_COLA')
    a('s_mov_b32 s25, 1024')
    a('s_cmp_eq_u32 s22, 0'); a('s_cbranch_scc1 K2_ROWA')
    a('v_sub_u32 v6, 0x800, v6'); a('s_mov_b32 s25, -1024')
    a.lab('K2_ROWA')
    a('v_lshlrev_b32 v6, 10, v6'); a('v_lshl_add_u32 v6, v7, 1, v6')
    for r in range(16):
        a(f'v_mov_b32 v8, {8*(r>>2)+(r&3)}'); a(f'v_mad_i32_i24 v{16+r}, v8, s25, v6')
    a('v_cmp_le_u32 vcc, 0x200000, v16'); a('v_subrev_u32 v8, 0x100000, v16'); a('s_nop 0'); a('v_cndmask_b32 v16, v16, v8, vcc')
    a('s_mov_b64 s[30:31], vcc')
    for r in range(16): a(f'buffer_load_ushort v{32+r}, v{16+r}, s[12:15], 0 offen')
    a('s_lshl_b32 s24, s6, 7'); a(f's_add_u32 s24, s24, {A1024}'); a('v_lshlrev_b32 v8, 2, v4')
    a('buffer_load_dword v9, v8, s[8:11], s24 offen')
    a('v_mov_b32 v12, 0xbf803f80'); a('v_mov_b32 v13, v12'); a('v_mov_b32 v14, v12'); a('v_mov_b32 v15, v12')
    extra=17
    a('s_lshl_b32 s24, s5, 5'); a('v_add_u32 v2, s24, v4'); a('v_cvt_f32_u32 v2, v2'); a('v_mul_f32 v2, 0x3a000000, v2')
    a('s_lshl_b32 s24, s7, 8'); a('v_lshl_add_u32 v6, v5, 2, s24')
    for q,dl in enumerate((0,1,2,3,8,9,10,11)):
        a(f'v_add_u32 v7, {dl}, v6'); a('v_cvt_f32_u32 v7, v7'); a(f'v_mul_f32 v{48+q}, v2, v7'); a(f'v_fract_f32 v{48+q}, v{48+q}')
    a('v_mul_f32 v11, 0x41800000, v2'); a('v_fract_f32 v11, v11')
    def gen():
        tc=(2,6,7,8);
        for h in range(2):
            for q in range(4): a(f'v_cos_f32 v{tc[q]}, v{48+4*h+q}')
            a(f'v_sin_f32_e64 v10, -v{48+4*h}')
            a(f'v_cvt_pk_bf16_f32 v{56+2*h}, v2, v6'); a(f'v_cvt_pk_bf16_f32 v{57+2*h}, v7, v8')
            a(f'v_sin_f32_e64 v6, -v{49+4*h}'); a(f'v_sin_f32_e64 v7, -v{50+4*h}'); a(f'v_sin_f32_e64 v8, -v{51+4*h}')
            a(f'v_add_f32 v{48+4*h}, v11, v{48+4*h}')
            a(f'v_cvt_pk_bf16_f32 v{60+2*h}, v10, v6'); a(f'v_cvt_pk_bf16_f32 v{61+2*h}, v7, v8')
            for q in range(1,4): a(f'v_add_f32 v{48+4*h+q}, v11, v{48+4*h+q}')
            for q in range(4): a(f'v_fract_f32 v{48+4*h+q}, v{48+4*h+q}')
    gen()
    def nl(i): return 4 if steps[i][0]=='d' else 2
    first={}
    def mf(acc,x,y):
        c=f'a[{acc}:{acc+15}]' if acc in first else '0'
        first[acc]=1
        a(f'v_mfma_f32_32x32x16_bf16 a[{acc}:{acc+15}], v[{x}:{x+3}], v[{y}:{y+3}], {c}')
    for i in range(44):
        kind,k=steps[i]; base=64+16*(i%NW)
        later=sum(nl(z) for z in range(i+1,min(i+NW,44)))
        if i<NW: later+=extra
        n=later
        a(f's_waitcnt vmcnt({min(n,63)})')
        if i in (0,11,22,33,43): a.stamp()
        if kind=='d':
            mf(0,base,base+8); mf(16,base,base+12); mf(32,base+4,base+8); mf(48,base+4,base+12)
        else:
            mf(64,56,base); mf(80,60,base+4); mf(96,12,base)
            if k<15:
                if i+NW<44: loads(i+NW)
                gen(); continue
        if i+NW<44: loads(i+NW)
    a('s_nop 7'); a('s_nop 7')
    for r in range(16):
        a(f'v_accvgpr_read_b32 v{64+r}, a{64+r}'); a(f'v_accvgpr_read_b32 v{96+r}, a{80+r}')
        a(f'v_add_f32 v{80+r}, v{64+r}, v{96+r}'); a(f'v_sub_f32 v{64+r}, v{64+r}, v{96+r}')
    a('s_mul_i32 s26, s7, 24832'); a('v_add_u32 v10, s26, v3')
    for t in range(4):
        for q in range(4): a(f'ds_write_b128 v10, a[{16*t+4*q}:{16*t+4*q+3}] offset:{t*4096+q*1024}')
    for t in range(2):
        for q in range(4): a(f'ds_write_b128 v10, v[{64+16*t+4*q}:{64+16*t+4*q+3}] offset:{(4+t)*4096+q*1024}')
    a('v_lshlrev_b32 v11, 2, v1'); a('v_add_u32 v11, s26, v11'); a('v_accvgpr_read_b32 v8, a96')
    a('ds_write_b32 v11, v8 offset:24576')
    a('s_waitcnt lgkmcnt(0)'); a('s_barrier'); a.stamp()
    a('s_lshl_b32 s27, s7, 12'); a('v_add_u32 v10, s27, v3')
    a('s_xor_b32 s27, s22, s23'); a('s_add_u32 s27, s27, 4'); a('s_lshl_b32 s27, s27, 12'); a('v_add_u32 v11, s27, v3')
    a('v_add_u32 v6, 49664, v10'); a('v_add_u32 v7, 49664, v11')
    for sw in range(4):
        rb=10 if sw<2 else 6; ry=11 if sw<2 else 7; o=(sw&1)*24832
        for q in range(4): a(f'ds_read_b128 v[{64+16*sw+4*q}:{67+16*sw+4*q}], v{rb} offset:{o+q*1024}')
        for q in range(4): a(f'ds_read_b128 v[{128+16*sw+4*q}:{131+16*sw+4*q}], v{ry} offset:{o+q*1024}')
    a('v_lshlrev_b32 v8, 2, v4'); a('v_add_u32 v2, 49664, v8')
    a('ds_read_b32 v48, v8 offset:24576'); a(f'ds_read_b32 v49, v8 offset:{24576+24832}')
    a('ds_read_b32 v50, v2 offset:24576'); a(f'ds_read_b32 v51, v2 offset:{24576+24832}')
    a('s_waitcnt lgkmcnt(0)')
    for r in range(16):
        a(f'v_add_f32 v{64+r}, v{64+r}, v{80+r}'); a(f'v_add_f32 v{96+r}, v{96+r}, v{112+r}')
        a(f'v_add_f32 v{128+r}, v{128+r}, v{144+r}'); a(f'v_add_f32 v{160+r}, v{160+r}, v{176+r}')
        a(f'v_add_f32 v{64+r}, v{64+r}, v{96+r}'); a(f'v_add_f32 v{128+r}, v{128+r}, v{160+r}')
        if r&1: a(f'v_sub_f32 v{128+r}, v{128+r}, v9')
        else:   a(f'v_add_f32 v{128+r}, v{128+r}, v9')
    a('v_add_f32 v48, v48, v49'); a('v_add_f32 v50, v50, v51'); a('v_add_f32 v48, v48, v50'); a('v_add_f32 v48, v48, v9')
    a('v_cndmask_b32 v128, v128, v48, s[30:31]')
    a('s_or_b32 s27, s6, s23'); a('v_or_b32 v8, s27, v4'); a('v_cmp_eq_u32 vcc, 0, v8'); a('v_mov_b32 v2, 0'); a('s_nop 0')
    a('s_cbranch_vccz K2_NOCOL')
    for r in range(16): a(f'v_cndmask_b32 v{128+r}, v{128+r}, v2, vcc')
    a.lab('K2_NOCOL')
    a('s_mov_b32 s28, 0xbfb8aa3b')
    for r in range(16): a(f'v_mul_f32 v{96+r}, s28, v{64+r}')
    for r in range(16): a(f'v_exp_f32 v{96+r}, v{96+r}')
    for r in range(16): a(f'v_add_f32 v{96+r}, 1.0, v{96+r}')
    for r in range(16): a(f'v_rcp_f32 v{96+r}, v{96+r}')
    for r in range(16): a(f'v_mul_f32 v{64+r}, v{64+r}, v{128+r}')
    for r in range(16): a(f'v_lshlrev_b32 v{32+r}, 16, v{32+r}')
    for r in range(16): a(f'v_fma_f32 v{64+r}, v{64+r}, v{96+r}, v{32+r}')
    for r in range(16): a(f'v_cvt_pk_bf16_f32 v{64+r}, v{64+r}, v{64+r}')
    for r in range(16): a(f'buffer_store_short v{64+r}, v{16+r}, s[16:19], 0 offen')
    a.stamp()
    if STAMPON(): a('s_waitcnt vmcnt(0)')
    a.stamp(); a.stamp_out(1)
    a.lab('K2_END')
    a('s_endpgm')
    return K,a.txt()
```

```python
HF=0; WF=0x700000; CF=0x8C0000; AF=0xCC0000; A1024=0xDC0000; WSZ=0xDC0400
STAMP=None
class Asm:
    def __init__(s): s.l=[]; s.ns=0
    def stamp(s):
        if STAMP is None: return
        s(f's_memtime s[{74+2*s.ns}:{75+2*s.ns}]'); s.ns+=1
    def stamp_out(s,k):
        if STAMP is None: return
        s.uid=getattr(s,'uid',0)+1
        L=f'ST_{k}_{s.uid}'
        s('s_waitcnt lgkmcnt(0)')
        s(f's_cmp_eq_u32 s2, {STAMP}'); s(f's_cbranch_scc0 {L}')
        s('v_cmp_eq_u32 vcc, 0, v0'); s('s_and_saveexec_b64 s[4:5], vcc'); s(f's_cbranch_execz {L}')
        s('s_load_dwordx2 s[6:7], s[0:1], 80'); s('s_waitcnt lgkmcnt(0)')
        s(f'v_mov_b32 v2, {128*k}')
        for i in range(s.ns):
            s(f'v_mov_b32 v4, s{74+2*i}'); s(f'v_mov_b32 v5, s{75+2*i}')
            s(f'global_store_dwordx2 v2, v[4:5], s[6:7] offset:{8*i}')
        s.lab(L)
    def __call__(s,x): s.l.append('    '+x)
    def lab(s,x): s.l.append(x+':')
    def txt(s): return '\n'.join(s.l)+'\n'

def srd(a,reg,ptr,size):
    a(f's_mov_b32 s{reg}, s{ptr}'); a(f's_and_b32 s{reg+1}, s{ptr+1}, 0xffff')
    a(f's_mov_b32 s{reg+2}, {hex(size)}'); a(f's_mov_b32 s{reg+3}, 0x20000')

def mirror_row(a,dst,tmp):
    a(f'v_sub_u32 v{dst}, 0x800, v{dst}')
    a(f'v_cmp_eq_u32 vcc, 0x800, v{dst}')
    a(f'v_mov_b32 v{tmp}, 0x400'); a('s_nop 0')
    a(f'v_cndmask_b32 v{dst}, v{dst}, v{tmp}, vcc')

def k1():
    a=Asm()
    K='fnet_k1_kernel'
    a.l.append(f'.globl {K}\n.p2align 8\n.type {K},@function\n{K}:')
    a('s_cmp_ge_u32 s2, 256'); a('s_cbranch_scc1 K1_END')
    a.stamp()
    a('s_load_dwordx4 s[36:39], s[0:1], 0')
    a('s_load_dwordx4 s[40:43], s[0:1], 16')
    a('s_load_dwordx2 s[44:45], s[0:1], 32')
    a('s_load_dwordx4 s[48:51], s[0:1], 48')
    a('s_load_dwordx2 s[52:53], s[0:1], 64')
    a('s_load_dwordx2 s[54:55], s[0:1], 88')
    a('s_and_b32 s3, s2, 7'); a('s_lshr_b32 s4, s2, 3')
    a('s_and_b32 s5, s3, 1'); a('s_lshl_b32 s5, s5, 3'); a('s_and_b32 s6, s4, 7'); a('s_add_u32 s5, s5, s6')
    a('s_lshr_b32 s6, s3, 1'); a('s_lshl_b32 s6, s6, 2'); a('s_lshr_b32 s7, s4, 3'); a('s_add_u32 s6, s6, s7')
    a('v_and_b32 v1, 63, v0')
    a('v_lshrrev_b32 v2, 6, v0')
    a('s_nop 0')
    a('v_readfirstlane_b32 s7, v2')
    a('s_cmp_ge_u32 s6, 14'); a('s_cselect_b32 s56, 1, 0')
    a('v_lshrrev_b32 v3, 3, v1')
    a('v_and_b32 v4, 7, v1')
    a('s_cmp_eq_u32 s56, 1'); a('s_cbranch_scc1 K1_ROWS_DFT')
    a('s_lshr_b32 s8, s7, 1'); a('s_lshl_b32 s9, s5, 2'); a('s_add_u32 s8, s8, s9')
    a('s_and_b32 s9, s7, 1'); a('s_lshl_b32 s9, s9, 4')
    a('s_lshr_b32 s10, s8, 1'); a('s_lshl_b32 s10, s10, 5'); a('s_add_u32 s9, s9, s10')
    a('v_add_u32 v5, s9, v3'); a('v_add_u32 v6, 8, v5')
    a('s_and_b32 s8, s8, 1'); a('s_cmp_eq_u32 s8, 0'); a('s_cbranch_scc1 K1_ROWS_A')
    mirror_row(a,5,7); mirror_row(a,6,7)
    a.lab('K1_ROWS_A')
    a('s_lshl_b32 s9, s7, 4'); a('v_add_u32 v7, s9, v3'); a('v_add_u32 v8, 8, v7')
    a('s_branch K1_ROWS_DONE')
    a.lab('K1_ROWS_DFT')
    a('s_lshl_b32 s9, s5, 6'); a('s_lshl_b32 s10, s7, 3'); a('s_add_u32 s9, s9, s10')
    a('v_add_u32 v5, s9, v3'); a('v_mov_b32 v6, v5')
    mirror_row(a,6,7)
    a('v_add_u32 v7, s10, v3'); a('v_add_u32 v8, 64, v7')
    a.lab('K1_ROWS_DONE')
    a('v_lshlrev_b32 v9, 4, v4')
    a('v_lshl_add_u32 v5, v5, 10, v9'); a('v_lshl_add_u32 v6, v6, 10, v9')
    for R in (7,8):
        a(f'v_and_b32 v10, 15, v{R}'); a('v_xor_b32 v10, v10, v4'); a('v_lshlrev_b32 v10, 4, v10')
        a(f'v_lshl_add_u32 v{R}, v{R}, 10, v10')
    a('s_waitcnt lgkmcnt(0)')
    srd(a,8,36,2048*1024)
    srd(a,32,54,WSZ)
    for jj in range(8): a(f'buffer_load_dwordx4 v[{64+4*jj}:{67+4*jj}], v5, s[8:11], 0 offen offset:{128*jj}')
    for jj in range(8): a(f'buffer_load_dwordx4 v[{96+4*jj}:{99+4*jj}], v6, s[8:11], 0 offen offset:{128*jj}')
    a('s_cmp_eq_u32 s56, 1')
    a('s_cselect_b32 s48, s42, s48'); a('s_cselect_b32 s49, s43, s49')
    a('s_cselect_b32 s50, s44, s50'); a('s_cselect_b32 s51, s45, s51')
    a('s_mov_b32 s57, 3584'); a('s_mov_b32 s59, 0x1C0000')
    a('s_cselect_b32 s57, 1024, s57')
    a('s_cselect_b32 s59, 0x80000, s59')
    srd(a,12,48,0); srd(a,16,50,0)
    a('s_mov_b32 s14, s59'); a('s_mov_b32 s18, s59')
    a('s_sub_u32 s58, s6, 14'); a('s_cmp_eq_u32 s56, 1'); a('s_cselect_b32 s58, s58, s6'); a('s_lshl_b32 s58, s58, 8')
    a('v_lshrrev_b32 v10, 4, v1'); a('s_lshl_b32 s20, s7, 3'); a('v_add_u32 v11, s20, v10')
    a('v_mul_lo_u32 v11, v11, s57')
    a('v_lshlrev_b32 v10, 2, v10'); a('v_and_b32 v12, 15, v1'); a('v_xor_b32 v10, v10, v12')
    a('v_lshl_add_u32 v11, v10, 4, v11'); a('v_add_u32 v11, s58, v11')
    a('s_lshl_b32 s60, s57, 2')
    a('s_lshl_b32 s61, s57, 6')
    a('s_lshl_b32 s62, s7, 11')
    def dma(stage,rb):
        a(f's_mul_i32 s63, s61, {stage}'); a('s_add_u32 s64, s63, s60')
        for part,sr in ((0,12),(1,16)):
            for q in range(2):
                a(f's_add_u32 m0, s62, {rb+part*16384+q*1024}')
                a('s_nop 0')
                a(f'buffer_load_dwordx4 v11, s[{sr}:{sr+3}], s{63+q} offen lds')
    dma(0,131072)
    a('v_lshrrev_b32 v10, 1, v0'); a('v_add_u32 v10, 64, v10'); a('v_mul_lo_u32 v10, v10, s57')
    a('v_and_b32 v12, 1, v0'); a('v_lshl_add_u32 v10, v12, 7, v10'); a('v_add_u32 v10, s58, v10')
    a('s_lshl_b32 s63, s57, 8')
    for sr in (12,16):
        a(f'buffer_load_dword v9, v10, s[{sr}:{sr+3}], 0 offen'); a(f'buffer_load_dword v9, v10, s[{sr}:{sr+3}], s63 offen')
    a('v_and_b32 v12, 31, v1'); a('v_lshrrev_b32 v13, 5, v1')
    M4='v_mfma_f32_4x4x4_16b_bf16'
    a('v_mov_b32 v48, 0x3f803f80'); a('v_mov_b32 v49, v48')
    a('v_and_b32 v2, 1, v1'); a('v_cmp_eq_u32 s[20:21], 1, v2'); a('v_and_b32 v2, 2, v1'); a('v_cmp_eq_u32 s[22:23], 2, v2')
    a('v_xor_b32 v5, 128, v7'); a('v_xor_b32 v6, 128, v8')
    for row,(base,S,Q) in enumerate(((64,128,132),(96,136,140))):
        a(f's_waitcnt vmcnt({16 if row==0 else 8})')
        if row==1: a.stamp()
        for p in range(16):
            x=f'v[{base+2*p}:{base+2*p+1}]'
            cS='0' if p==0 else f'v[{S}:{S+3}]'; cQ='0' if p==0 else f'v[{Q}:{Q+3}]'
            a(f'{M4} v[{S}:{S+3}], v[48:49], {x}, {cS}'); a(f'{M4} v[{Q}:{Q+3}], {x}, {x}, {cQ}'); a('s_nop 0')
    a('s_nop 4')
    for (Q,d) in ((132,17),(140,19)):
        a(f'v_cndmask_b32 v2, v{Q}, v{Q+1}, s[20:21]'); a(f'v_cndmask_b32 v4, v{Q+2}, v{Q+3}, s[20:21]')
        a(f'v_cndmask_b32 v{d}, v2, v4, s[22:23]')
    a('v_mov_b32 v16, v128'); a('v_mov_b32 v18, v136'); a('s_nop 1')
    for ctl in ('quad_perm:[1,0,3,2]','quad_perm:[2,3,0,1]','row_half_mirror'):
        for r in (16,17,18,19):
            a(f'v_add_f32_dpp v{r}, v{r}, v{r} {ctl} row_mask:0xf bank_mask:0xf')
        a('s_nop 1')
    a('s_mov_b32 s68, 0x3b000000')
    a('s_mov_b32 s69, 0x3727c5ac')
    for (sm,sq,rr,mm) in ((16,17,56,57),(18,19,58,59)):
        a(f'v_mul_f32 v{sm}, s68, v{sm}')
        a(f'v_mul_f32 v{sq}, s68, v{sq}')
        a(f'v_fma_f32 v{sq}, -v{sm}, v{sm}, v{sq}')
        a(f'v_max_f32 v{sq}, 0, v{sq}')
        a(f'v_add_f32 v{sq}, s69, v{sq}')
        a(f'v_rsq_f32 v{rr}, v{sq}')
        a('s_nop 0')
        a(f'v_mul_f32 v{mm}, v{sm}, v{rr}')
    a('v_and_b32 v2, 1, v1'); a('v_lshlrev_b32 v60, 4, v2')
    def diag(dst,val):
        a(f'v_cvt_pk_bf16_f32 v2, v{val}, v{val}'); a('v_and_b32 v2, 0xffff, v2'); a('v_lshlrev_b32 v4, 16, v2')
        a(f'v_sub_f32 v4, v{val}, v4'); a('v_cvt_pk_bf16_f32 v4, v4, v4'); a('v_and_b32 v4, 0xffff, v4')
        for (src,d) in ((2,dst),(4,dst+2)):
            a(f'v_lshlrev_b32 v{src}, v60, v{src}')
            a(f'v_cndmask_b32 v{d}, v{src}, 0, s[22:23]') if False else None
            a(f'v_cndmask_b32 v{d}, v{src}, v61, s[22:23]'); a(f'v_cndmask_b32 v{d+1}, v61, v{src}, s[22:23]')
    a('v_mov_b32 v61, 0')
    def wr(jj):
        for (base,ae,ao) in ((64,7,5),(96,8,6)):
            ad=ao if jj&1 else ae
            a(f'ds_write_b128 v{ad}, v[{base+4*jj}:{base+3+4*jj}] offset:{(jj>>1)*256}')
    def cvt(jj):
        D=128+16*(jj&1)
        for g in range(4):
            base=(64 if g<2 else 96)+4*jj+2*(g&1)
            a(f'v_cvt_pk_bf16_f32 v{base}, v{D+4*g}, v{D+4*g+1}'); a(f'v_cvt_pk_bf16_f32 v{base+1}, v{D+4*g+2}, v{D+4*g+3}')
        wr(jj)
    def norm(terms):
        for jj in range(9):
            if jj<8:
                D=128+16*(jj&1); n=len(terms[0])
                for ti in range(n):
                    for g in range(4):
                        o=g>>1; cf,row=terms[o][ti]
                        xb=(64 if row==0 else 96)+4*jj+2*(g&1)
                        c=f'v[{48+4*o}:{51+4*o}]' if ti==0 else f'v[{D+4*g}:{D+4*g+3}]'
                        a(f'{M4} v[{D+4*g}:{D+4*g+3}], v[{cf}:{cf+1}], v[{xb}:{xb+1}], {c}')
            else: a('s_nop 4')
            if jj>0: cvt(jj-1)
    a('s_cmp_eq_u32 s56, 1'); a('s_cbranch_scc1 K1_NORM_DFT')
    diag(16,56); diag(20,58)
    for q in range(4): a(f'v_sub_f32 v{48+q}, 0, v57'); a(f'v_sub_f32 v{52+q}, 0, v59')
    a('s_nop 1')
    norm([[(16,0),(18,0)],[(20,1),(22,1)]])
    a('s_branch K1_NORM_DONE')
    a.lab('K1_NORM_DFT')
    a('s_lshl_b32 s71, s5, 3'); a('s_add_u32 s71, s71, s7')
    a('v_or_b32 v30, s71, v3'); a('v_cmp_eq_u32 vcc, 0, v30')
    a('v_mov_b32 v62, 1.0'); a('v_mov_b32 v63, -1.0')
    a('v_cndmask_b32 v50, v62, v61, vcc')
    a('v_cndmask_b32 v51, v63, v62, vcc')
    a('v_mul_f32 v52, v50, v58'); a('v_mul_f32 v53, v50, v56'); a('v_mul_f32 v54, v51, v58')
    diag(16,56); diag(20,52); diag(24,53); diag(28,54)
    a('v_fma_f32 v62, v50, v59, v57'); a('v_mul_f32 v63, v50, v57'); a('v_fma_f32 v63, v51, v59, v63')
    for q in range(4): a(f'v_sub_f32 v{48+q}, 0, v62'); a(f'v_sub_f32 v{52+q}, 0, v63')
    a('s_nop 1')
    norm([[(16,0),(18,0),(20,1),(22,1)],[(24,0),(26,0),(28,1),(30,1)]])
    a.lab('K1_NORM_DONE')
    a.stamp()
    a('v_lshlrev_b32 v14, 4, v1')
    a('s_waitcnt vmcnt(4)')
    a('s_and_b32 s72, s7, 3'); a('s_lshr_b32 s73, s7, 2')
    a('s_lshl_b32 s20, s72, 5'); a('v_add_u32 v15, s20, v12')
    a('v_and_b32 v16, 15, v15'); a('v_xor_b32 v16, v16, v13'); a('v_lshlrev_b32 v16, 4, v16')
    a('v_lshl_add_u32 v15, v15, 10, v16')
    for m in range(8): a(f'v_xor_b32 v{16+m}, {32*m}, v15')
    a('s_waitcnt lgkmcnt(0)'); a('s_barrier')
    for ks in range(32):
        a(f'ds_read_b128 v[{128+4*ks}:{131+4*ks}], v{16+(ks&7)} offset:{(ks>>3)*256}')
    a('v_lshrrev_b32 v24, 4, v1'); a('v_and_b32 v25, 15, v1'); a('v_lshrrev_b32 v26, 2, v25')
    a('v_lshrrev_b32 v27, 1, v24'); a('v_lshl_add_u32 v27, v27, 3, v26'); a('v_lshlrev_b32 v27, 8, v27')
    a('s_lshl_b32 s20, s73, 1'); a('v_xor_b32 v26, s20, v26'); a('v_lshl_add_u32 v27, v26, 6, v27')
    a('v_and_b32 v24, 1, v24'); a('v_lshl_add_u32 v27, v24, 5, v27')
    a('v_and_b32 v25, 3, v25'); a('v_lshl_add_u32 v27, v25, 3, v27')
    a('v_xor_b32 v28, 64, v27')
    a('s_or_b32 s20, s58, s73'); a('v_or_b32 v29, s20, v12'); a('v_cmp_eq_u32 vcc, 0, v29')
    a('v_mov_b32 v30, 0'); a('v_bfrev_b32 v31, 1'); a('v_cndmask_b32 v29, v30, v31, vcc')
    a('s_waitcnt lgkmcnt(0)'); a('s_barrier')
    a.stamp()
    RB=[131072,0,32768,65536,98304,131072,0,32768]
    for st in (1,2,3,4): dma(st,RB[st])
    srd(a,20+4,52,1792*1024)
    a('s_min_u32 s28, s2, 223'); a('s_mul_i32 s29, s28, 4682'); a('s_lshr_b32 s29, s29, 16')
    a('s_mul_i32 s30, s29, 14'); a('s_sub_u32 s30, s28, s30'); a('s_lshl_b32 s30, s30, 3'); a('s_add_u32 s30, s30, s7')
    a('s_lshr_b32 s31, s29, 1'); a('s_lshl_b32 s31, s31, 5')
    a('v_add_u32 v24, s31, v12')
    a('s_and_b32 s31, s29, 1'); a('s_cmp_eq_u32 s31, 0'); a('s_cbranch_scc1 K1_WD_A')
    a('v_sub_u32 v24, 0x200, v24'); a('v_cmp_eq_u32 vcc, 0x200, v24'); a('v_mov_b32 v25, 0x100'); a('s_nop 0'); a('v_cndmask_b32 v24, v24, v25, vcc')
    a.lab('K1_WD_A')
    a('v_lshlrev_b32 v24, 1, v24'); a('v_lshl_add_u32 v24, v13, 12, v24')
    a('s_lshl_b32 s31, s30, 14'); a('s_add_u32 s66, s31, 8192')
    for g,so in ((0,'s31'),(1,'s66')):
        for i in range(4):
            a(f'buffer_load_ushort v{16+4*g+i}, v24, s[24:27], {so} offen offset:{1024*i}')
    a('s_lshl_b32 s66, s28, 3'); a('s_add_u32 s66, s66, s7'); a('s_lshl_b32 s66, s66, 10'); a(f's_add_u32 s66, s66, {WF}')
    def main(dft,tag):
        def reads(i):
            st,kk=i>>2,i&3; buf=32+16*(i&1)
            if kk==0:
                a(f'v_add_u32 v2, {RB[st]}, v27'); a(f'v_add_u32 v3, {RB[st]}, v28')
            for part in range(2):
                for t in range(2):
                    for half in range(2):
                        r=buf+8*part+4*t+2*half
                        a(f'ds_read_b64_tr_b16 v[{r}:{r+1}], v{2+t} offset:{part*16384+kk*4096+half*1024}')
        reads(0)
        for i in range(32):
            st,kk=i>>2,i&3; buf=32+16*(i&1)
            a('s_waitcnt lgkmcnt(0)')
            if kk==3 and st<7:
                n=[20,20,20,20,8,4,0][st]
                a(f's_waitcnt vmcnt({n})'); a('s_barrier')
            if i in (4,16,31) and not dft: a.stamp()
            if i<31: reads(i+1)
            if kk==3 and st<=2: dma(st+5,RB[st+5])
            if i==20:
                for q in range(4): a(f'v_lshl_or_b32 v{4+q}, v{17+2*q}, 16, v{16+2*q}')
                a('s_cmp_ge_u32 s2, 224'); a(f's_cbranch_scc1 K1_NOWD_{tag}')
                a('buffer_store_dwordx4 v[4:7], v14, s[32:35], s66 offen')
                a.lab(f'K1_NOWD_{tag}')
            if dft:
                for q in range(4): a(f'v_xor_b32 v{buf+q}, v29, v{buf+q}')
            order=(1,2,3,0) if dft else (0,1,2,3)
            for f in order:
                acc=64+16*f; w=f'v[{buf+4*f}:{buf+4*f+3}]'; x=f'v[{128+4*i}:{131+4*i}]'
                c='0' if i==0 else f'v[{acc}:{acc+15}]'
                if dft: a(f'v_mfma_f32_32x32x16_bf16 v[{acc}:{acc+15}], {x}, {w}, {c}')
                else:   a(f'v_mfma_f32_32x32x16_bf16 v[{acc}:{acc+15}], {w}, {x}, {c}')
    a('s_cmp_eq_u32 s56, 1'); a('s_cbranch_scc1 K1_MAIN_DFT')
    main(False,'g')
    a('s_lshl_b32 s20, s5, 2'); a('s_add_u32 s20, s20, s72'); a('s_mul_i32 s20, s20, 114688')
    a('s_lshl_b32 s21, s6, 3'); a('s_lshl_b32 s22, s73, 2'); a('s_add_u32 s21, s21, s22'); a('s_lshl_b32 s21, s21, 10')
    a('s_add_u32 s20, s20, s21')
    a('s_nop 7'); a('s_nop 7')
    for t in range(2):
        g=64+16*t; u=96+16*t
        for r in range(16):
            a(f'v_max_f32 v{g+r}, 0, v{g+r}'); a(f'v_mul_f32 v{g+r}, v{g+r}, v{u+r}')
        for q in range(8): a(f'v_cvt_pk_bf16_f32 v{32+8*t+q}, v{g+2*q}, v{g+2*q+1}')
        a(f'buffer_store_dwordx4 v[{32+8*t}:{35+8*t}], v14, s[32:35], s20 offen offset:{2048*t}')
        a(f'buffer_store_dwordx4 v[{36+8*t}:{39+8*t}], v14, s[32:35], s20 offen offset:{2048*t+1024}')
    a.stamp(); a('s_waitcnt vmcnt(0)'); a.stamp(); a.stamp_out(0)
    a('s_endpgm')
    a.lab('K1_MAIN_DFT')
    main(True,'d')
    a('s_lshr_b32 s20, s72, 1'); a('s_lshl_b32 s21, s20, 19')
    a('s_lshr_b32 s22, s58, 8'); a('s_lshl_b32 s22, s22, 2'); a('s_lshl_b32 s23, s73, 1'); a('s_add_u32 s22, s22, s23')
    a('s_lshl_b32 s23, s22, 16'); a('s_add_u32 s21, s21, s23')
    a('s_lshl_b32 s23, s5, 2'); a('s_and_b32 s24, s72, 1'); a('s_lshl_b32 s24, s24, 1'); a('s_add_u32 s23, s23, s24'); a('s_lshl_b32 s23, s23, 10')
    a('s_add_u32 s21, s21, s23'); a(f's_add_u32 s21, s21, {AF}'); a('s_add_u32 s25, s21, 65536')
    a('s_nop 7'); a('s_nop 7')
    a('s_lshl_b32 s24, s5, 2'); a('s_add_u32 s24, s24, s72'); a('s_cmp_eq_u32 s24, 2'); a('s_cbranch_scc0 K1_NO1024')
    a('s_lshl_b32 s24, s22, 7'); a(f's_add_u32 s24, s24, {A1024}')
    a('v_lshlrev_b32 v2, 2, v1'); a('v_cmp_gt_u32 vcc, 32, v1'); a('s_and_saveexec_b64 s[26:27], vcc')
    a('buffer_store_dword v64, v2, s[32:35], s24 offen'); a('buffer_store_dword v80, v2, s[32:35], s24 offen offset:128')
    a('s_mov_b64 exec, s[26:27]')
    a.lab('K1_NO1024')
    a('s_cmp_eq_u32 s20, 0'); a('s_cbranch_scc1 K1_EP_AE')
    for r in range(32): a(f'v_mov_b32 v{64+r}, v{96+r}')
    a.lab('K1_EP_AE')
    for t in range(2):
        g=64+16*t
        for q in range(8): a(f'v_cvt_pk_bf16_f32 v{32+8*t+q}, v{g+2*q}, v{g+2*q+1}')
        so='s21' if t==0 else 's25'
        a(f'buffer_store_dwordx4 v[{32+8*t}:{35+8*t}], v14, s[32:35], {so} offen')
        a(f'buffer_store_dwordx4 v[{36+8*t}:{39+8*t}], v14, s[32:35], {so} offen offset:1024')
    a.lab('K1_END')
    a('s_endpgm')
    return K,a.txt()
```

```python
HF=0; WF=0x700000; CF=0x8C0000; AF=0xCC0000; A1024=0xDC0000; WSZ=0xDC0400
STAMP=None
class Asm:
    def __init__(s): s.l=[]; s.ns=0
    def stamp(s):
        if STAMP is None: return
        if s.ns==0: s('s_memrealtime s[98:99]')
        s(f's_memtime s[{74+2*s.ns}:{75+2*s.ns}]'); s.ns+=1
    def stamp_out(s,k):
        if STAMP is None: return
        s.uid=getattr(s,'uid',0)+1
        L=f'ST_{k}_{s.uid}'
        s('s_memrealtime s[100:101]'); s('s_load_dwordx2 s[6:7], s[0:1], 80'); s('s_waitcnt lgkmcnt(0)')
        s('v_cmp_eq_u32 vcc, 0, v0'); s('s_and_saveexec_b64 s[4:5], vcc'); s(f's_cbranch_execz {L}')
        s(f's_lshl_b32 s8, s2, 4'); s(f's_add_u32 s8, s8, {1024+4096*k}'); s('v_mov_b32 v2, s8')
        s('v_mov_b32 v4, s98'); s('v_mov_b32 v5, s99'); s('v_mov_b32 v6, s100'); s('v_mov_b32 v7, s101')
        s('global_store_dwordx4 v2, v[4:7], s[6:7]')
        s(f's_cmp_eq_u32 s2, {STAMP}'); s(f's_cbranch_scc0 {L}')
        s('v_cmp_eq_u32 vcc, 0, v0'); s('s_and_saveexec_b64 s[4:5], vcc'); s(f's_cbranch_execz {L}')
        s('s_load_dwordx2 s[6:7], s[0:1], 80'); s('s_waitcnt lgkmcnt(0)')
        s(f'v_mov_b32 v2, {128*k}')
        for i in range(s.ns):
            s(f'v_mov_b32 v4, s{74+2*i}'); s(f'v_mov_b32 v5, s{75+2*i}')
            s(f'global_store_dwordx2 v2, v[4:5], s[6:7] offset:{8*i}')
        s.lab(L)
    def __call__(s,x): s.l.append('    '+x)
    def lab(s,x): s.l.append(x+':')
    def txt(s): return '\n'.join(s.l)+'\n'

def srd(a,reg,ptr,size):
    a(f's_mov_b32 s{reg}, s{ptr}'); a(f's_and_b32 s{reg+1}, s{ptr+1}, 0xffff')
    a(f's_mov_b32 s{reg+2}, {hex(size)}'); a(f's_mov_b32 s{reg+3}, 0x20000')

def mirror_row(a,dst,tmp):
    a(f'v_sub_u32 v{dst}, 0x800, v{dst}')
    a(f'v_cmp_eq_u32 vcc, 0x800, v{dst}')
    a(f'v_mov_b32 v{tmp}, 0x400'); a('s_nop 0')
    a(f'v_cndmask_b32 v{dst}, v{dst}, v{tmp}, vcc')

def k1(SC=''):
    a=Asm()
    K='fnet_k1_kernel'
    a.l.append(f'.globl {K}\n.p2align 8\n.type {K},@function\n{K}:')
    a('s_cmp_ge_u32 s2, 256'); a('s_cbranch_scc1 K1_END')
    a.stamp()
    a('s_load_dwordx4 s[36:39], s[0:1], 0')
    a('s_load_dwordx4 s[40:43], s[0:1], 16')
    a('s_load_dwordx2 s[44:45], s[0:1], 32')
    a('s_load_dwordx4 s[48:51], s[0:1], 48')
    a('s_load_dwordx2 s[52:53], s[0:1], 64')
    a('s_load_dwordx2 s[54:55], s[0:1], 88')
    a('s_and_b32 s3, s2, 7'); a('s_lshr_b32 s4, s2, 3')
    a('s_and_b32 s5, s3, 1'); a('s_lshl_b32 s5, s5, 3'); a('s_and_b32 s6, s4, 7'); a('s_add_u32 s5, s5, s6')
    a('s_lshr_b32 s6, s3, 1'); a('s_lshl_b32 s6, s6, 2'); a('s_lshr_b32 s7, s4, 3'); a('s_add_u32 s6, s6, s7')
    a('v_and_b32 v1, 63, v0')
    a('v_lshrrev_b32 v2, 6, v0')
    a('s_nop 0')
    a('v_readfirstlane_b32 s7, v2')
    a('s_cmp_ge_u32 s6, 14'); a('s_cselect_b32 s56, 1, 0')
    a('v_lshrrev_b32 v3, 3, v1')
    a('v_and_b32 v4, 7, v1')
    a('s_cmp_eq_u32 s56, 1'); a('s_cbranch_scc1 K1_ROWS_DFT')
    a('s_lshr_b32 s8, s7, 1'); a('s_lshl_b32 s9, s5, 2'); a('s_add_u32 s8, s8, s9')
    a('s_and_b32 s9, s7, 1'); a('s_lshl_b32 s9, s9, 4')
    a('s_lshr_b32 s10, s8, 1'); a('s_lshl_b32 s10, s10, 5'); a('s_add_u32 s9, s9, s10')
    a('v_add_u32 v5, s9, v3'); a('v_add_u32 v6, 8, v5')
    a('s_and_b32 s8, s8, 1'); a('s_cmp_eq_u32 s8, 0'); a('s_cbranch_scc1 K1_ROWS_A')
    mirror_row(a,5,7); mirror_row(a,6,7)
    a.lab('K1_ROWS_A')
    a('s_lshl_b32 s9, s7, 4'); a('v_add_u32 v7, s9, v3'); a('v_add_u32 v8, 8, v7')
    a('s_branch K1_ROWS_DONE')
    a.lab('K1_ROWS_DFT')
    a('s_lshl_b32 s9, s5, 6'); a('s_lshl_b32 s10, s7, 3'); a('s_add_u32 s9, s9, s10')
    a('v_add_u32 v5, s9, v3'); a('v_mov_b32 v6, v5')
    mirror_row(a,6,7)
    a('v_add_u32 v7, s10, v3'); a('v_add_u32 v8, 64, v7')
    a.lab('K1_ROWS_DONE')
    a('v_lshlrev_b32 v9, 4, v4')
    a('v_lshl_add_u32 v5, v5, 10, v9'); a('v_lshl_add_u32 v6, v6, 10, v9')
    for R in (7,8):
        a(f'v_and_b32 v10, 15, v{R}'); a('v_xor_b32 v10, v10, v4'); a('v_lshlrev_b32 v10, 4, v10')
        a(f'v_lshl_add_u32 v{R}, v{R}, 9, v10')
    a('s_waitcnt lgkmcnt(0)')
    srd(a,8,36,2048*1024)
    srd(a,32,54,WSZ)
    for jj in range(8): a(f'buffer_load_dwordx4 v[{64+4*jj}:{67+4*jj}], v5, s[8:11], 0 offen offset:{128*jj}')
    for jj in range(8): a(f'buffer_load_dwordx4 v[{96+4*jj}:{99+4*jj}], v6, s[8:11], 0 offen offset:{128*jj}')
    a('s_cmp_eq_u32 s56, 1')
    a('s_cselect_b32 s48, s42, s48'); a('s_cselect_b32 s49, s43, s49')
    a('s_cselect_b32 s50, s44, s50'); a('s_cselect_b32 s51, s45, s51')
    a('s_mov_b32 s57, 3584'); a('s_mov_b32 s59, 0x1C0000')
    a('s_cselect_b32 s57, 1024, s57')
    a('s_cselect_b32 s59, 0x80000, s59')
    srd(a,12,48,0); srd(a,16,50,0)
    a('s_mov_b32 s14, s59'); a('s_mov_b32 s18, s59')
    a('s_sub_u32 s58, s6, 14'); a('s_cmp_eq_u32 s56, 1'); a('s_cselect_b32 s58, s58, s6'); a('s_lshl_b32 s58, s58, 8')
    a('v_lshrrev_b32 v10, 4, v1'); a('s_lshl_b32 s20, s7, 3'); a('v_add_u32 v11, s20, v10')
    a('v_mul_lo_u32 v11, v11, s57')
    a('v_lshlrev_b32 v10, 2, v10'); a('v_and_b32 v12, 15, v1'); a('v_xor_b32 v10, v10, v12')
    a('v_lshl_add_u32 v11, v10, 4, v11'); a('v_add_u32 v11, s58, v11')
    a('s_lshl_b32 s60, s57, 2')
    a('s_lshl_b32 s61, s57, 6')
    a('s_lshl_b32 s62, s7, 11')
    def dma1(stage,rb,idx):
        part,q=idx>>1,idx&1; sr=(12,16)[part]
        a(f's_mul_i32 s63, s61, {stage}')
        if q: a('s_add_u32 s63, s63, s60')
        a(f's_add_u32 m0, s62, {rb+part*16384+q*1024}'); a('s_nop 0')
        a(f'buffer_load_dwordx4 v11, s[{sr}:{sr+3}], s63 offen lds')
    def dma(stage,rb):
        a(f's_mul_i32 s63, s61, {stage}'); a('s_add_u32 s64, s63, s60')
        for part,sr in ((0,12),(1,16)):
            for q in range(2):
                a(f's_add_u32 m0, s62, {rb+part*16384+q*1024}')
                a('s_nop 0')
                a(f'buffer_load_dwordx4 v11, s[{sr}:{sr+3}], s{63+q} offen lds')
    dma(0,65536)
    a('v_and_b32 v12, 31, v1'); a('v_lshrrev_b32 v13, 5, v1')
    M4='v_mfma_f32_4x4x4_16b_bf16'
    a('v_mov_b32 v48, 0x3f803f80'); a('v_mov_b32 v49, v48')
    a('v_and_b32 v2, 1, v1'); a('v_cmp_eq_u32 s[20:21], 1, v2'); a('v_and_b32 v2, 2, v1'); a('v_cmp_eq_u32 s[22:23], 2, v2')
    a('v_xor_b32 v5, 128, v7'); a('v_xor_b32 v6, 128, v8')
    a('v_mov_b32 v16, 0'); a('v_mov_b32 v18, 0'); a('s_mov_b32 s67, 0x3f803f80')
    for row,(base,S,Q) in enumerate(((64,16,132),(96,18,140))):
        a(f's_waitcnt vmcnt({12 if row==0 else 4})')
        if row==1:
            a.stamp(); dma(1,98304)
        for p in range(16):
            x=f'v[{base+2*p}:{base+2*p+1}]'
            cQ='0' if p==0 else f'v[{Q}:{Q+3}]'
            a(f'{M4} v[{Q}:{Q+3}], {x}, {x}, {cQ}')
            a(f'v_dot2_f32_bf16 v{S}, v{base+2*p}, s67, v{S}'); a(f'v_dot2_f32_bf16 v{S}, v{base+2*p+1}, s67, v{S}')
    a('s_nop 4')
    for (Q,d) in ((132,17),(140,19)):
        a(f'v_cndmask_b32 v2, v{Q}, v{Q+1}, s[20:21]'); a(f'v_cndmask_b32 v4, v{Q+2}, v{Q+3}, s[20:21]')
        a(f'v_cndmask_b32 v{d}, v2, v4, s[22:23]')
    a('s_nop 1')
    for ctl in ('quad_perm:[1,0,3,2]','quad_perm:[2,3,0,1]','row_half_mirror'):
        for r in (16,17,18,19):
            a(f'v_add_f32_dpp v{r}, v{r}, v{r} {ctl} row_mask:0xf bank_mask:0xf')
        a('s_nop 1')
    a('s_mov_b32 s68, 0x3b000000')
    a('s_mov_b32 s69, 0x3727c5ac')
    for (sm,sq,rr,mm) in ((16,17,56,57),(18,19,58,59)):
        a(f'v_mul_f32 v{sm}, s68, v{sm}')
        a(f'v_mul_f32 v{sq}, s68, v{sq}')
        a(f'v_fma_f32 v{sq}, -v{sm}, v{sm}, v{sq}')
        a(f'v_max_f32 v{sq}, 0, v{sq}')
        a(f'v_add_f32 v{sq}, s69, v{sq}')
        a(f'v_rsq_f32 v{rr}, v{sq}')
        a('s_nop 0')
        a(f'v_sub_f32 v{mm}, 0, v{sm}')
    a('v_and_b32 v2, 1, v1'); a('v_lshlrev_b32 v60, 4, v2'); a('v_mov_b32 v61, 0'); a('v_mov_b32 v2, 0x3f80')
    a('v_lshlrev_b32 v2, v60, v2'); a('v_cndmask_b32 v16, v2, v61, s[22:23]'); a('v_cndmask_b32 v17, v61, v2, s[22:23]')
    for q in range(4): a(f'v_mov_b32 v{48+q}, v57'); a(f'v_mov_b32 v{52+q}, v59')
    def wr(jj):
        for (base,ae,ao) in ((64,7,5),(96,8,6)):
            ad=ao if jj&1 else ae
            a(f'ds_write_b128 v{ad}, v[{base+4*jj}:{base+3+4*jj}] offset:{((jj&3)>>1)*256}')
    def cvt(jj,dft):
        D=128+16*(jj&1)
        if dft:
            for h in range(4):
                u=f'v[{D+2*h}:{D+2*h+1}]'; v=f'v[{D+8+2*h}:{D+8+2*h+1}]'
                a(f'v_pk_mul_f32 v[32:33], {u}, v[20:21] op_sel_hi:[1,0]'); a(f'v_pk_mul_f32 v[34:35], {u}, v[24:25] op_sel_hi:[1,0]')
                a(f'v_pk_fma_f32 v[32:33], {v}, v[22:23], v[32:33] op_sel_hi:[1,0,1]'); a(f'v_pk_fma_f32 v[34:35], {v}, v[26:27], v[34:35] op_sel_hi:[1,0,1]')
                a(f'v_cvt_pk_bf16_f32 v{64+4*jj+h}, v32, v33'); a(f'v_cvt_pk_bf16_f32 v{96+4*jj+h}, v34, v35')
        else:
            for g in range(4):
                base=(64 if g<2 else 96)+4*jj+2*(g&1)
                a(f'v_cvt_pk_bf16_f32 v{base}, v{D+4*g}, v{D+4*g+1}'); a(f'v_cvt_pk_bf16_f32 v{base+1}, v{D+4*g+2}, v{D+4*g+3}')
        if jj<4: wr(jj)
    def norm(dft):
        for jj in range(9):
            if jj<8:
                D=128+16*(jj&1)
                for g in range(4):
                    xb=(64 if g<2 else 96)+4*jj+2*(g&1)
                    a(f'{M4} v[{D+4*g}:{D+4*g+3}], v[16:17], v[{xb}:{xb+1}], v[{48+4*(g>>1)}:{51+4*(g>>1)}]')
                if jj==0: a('s_nop 4')
            else: a('s_nop 4')
            if jj>0: cvt(jj-1,dft)
    a('s_nop 1')
    a('s_cmp_eq_u32 s56, 1'); a('s_cbranch_scc1 K1_NORM_DFT')
    a('s_lshl_b32 s71, s7, 6'); a('s_add_u32 s71, s71, 131072'); a('v_lshl_add_u32 v2, v3, 2, s71')
    a('ds_write_b32 v2, v56'); a('ds_write_b32 v2, v58 offset:32')
    norm(False)
    a('s_branch K1_NORM_DONE')
    a.lab('K1_NORM_DFT')
    a('s_lshl_b32 s71, s5, 3'); a('s_add_u32 s71, s71, s7')
    a('v_or_b32 v30, s71, v3'); a('v_cmp_eq_u32 vcc, 0, v30')
    a('v_mov_b32 v62, 1.0'); a('v_mov_b32 v63, -1.0')
    a('v_cndmask_b32 v30, v62, v61, vcc'); a('v_cndmask_b32 v31, v63, v62, vcc')
    a('v_mov_b32 v20, v56'); a('v_mul_f32 v22, v30, v58'); a('v_mul_f32 v24, v30, v56'); a('v_mul_f32 v26, v31, v58')
    norm(True)
    a.lab('K1_NORM_DONE')
    a.stamp()
    a('v_lshlrev_b32 v14, 4, v1')
    a('s_and_b32 s72, s7, 3'); a('s_lshr_b32 s73, s7, 2')
    a('s_lshl_b32 s20, s72, 5'); a('v_add_u32 v15, s20, v12')
    a('v_and_b32 v16, 15, v15'); a('v_xor_b32 v16, v16, v13'); a('v_lshlrev_b32 v16, 4, v16')
    a('v_lshl_add_u32 v15, v15, 9, v16')
    for m in range(8): a(f'v_xor_b32 v{16+m}, {32*m}, v15')
    a('s_waitcnt lgkmcnt(0)'); a.stamp(); a('s_barrier'); a.stamp()
    for ks in range(16):
        a(f'ds_read_b128 v[{128+4*ks}:{131+4*ks}], v{16+(ks&7)} offset:{(ks>>3)*256}')
    a('s_lshl_b32 s20, s72, 7'); a('s_add_u32 s20, s20, 131072'); a('v_lshl_add_u32 v2, v12, 2, s20'); a('ds_read_b32 v15, v2')
    a('s_waitcnt lgkmcnt(0)'); a('s_barrier')
    dma(2,131072)
    for jj in range(4,8): wr(jj)
    a('s_waitcnt lgkmcnt(0)'); a('s_barrier')
    for ks in range(16,32):
        a(f'ds_read_b128 v[{128+4*ks}:{131+4*ks}], v{16+(ks&7)} offset:{((ks&15)>>3)*256}')
    a('v_lshrrev_b32 v24, 4, v1'); a('v_and_b32 v25, 15, v1'); a('v_lshrrev_b32 v26, 2, v25')
    a('v_lshrrev_b32 v27, 1, v24'); a('v_lshl_add_u32 v27, v27, 3, v26'); a('v_lshlrev_b32 v27, 8, v27')
    a('s_lshl_b32 s20, s73, 1'); a('v_xor_b32 v26, s20, v26'); a('v_lshl_add_u32 v27, v26, 6, v27')
    a('v_and_b32 v24, 1, v24'); a('v_lshl_add_u32 v27, v24, 5, v27')
    a('v_and_b32 v25, 3, v25'); a('v_lshl_add_u32 v27, v25, 3, v27')
    a('v_xor_b32 v28, 64, v27')
    a('s_or_b32 s20, s58, s73'); a('v_or_b32 v29, s20, v12'); a('v_cmp_eq_u32 vcc, 0, v29')
    a('v_mov_b32 v30, 0'); a('v_bfrev_b32 v31, 1'); a('v_cndmask_b32 v29, v30, v31, vcc')
    a('s_waitcnt vmcnt(8)'); a('s_waitcnt lgkmcnt(0)'); a.stamp(); a('s_barrier')
    a.stamp()
    RB=[65536,98304,131072,0,32768,65536,98304,131072]
    srd(a,20+4,52,1792*1024)
    a('s_min_u32 s28, s2, 223'); a('s_mul_i32 s29, s28, 4682'); a('s_lshr_b32 s29, s29, 16')
    a('s_mul_i32 s30, s29, 14'); a('s_sub_u32 s30, s28, s30'); a('s_lshl_b32 s30, s30, 3'); a('s_add_u32 s30, s30, s7')
    a('s_lshr_b32 s31, s29, 1'); a('s_lshl_b32 s31, s31, 5')
    a('v_add_u32 v24, s31, v12')
    a('s_and_b32 s31, s29, 1'); a('s_cmp_eq_u32 s31, 0'); a('s_cbranch_scc1 K1_WD_A')
    a('v_sub_u32 v24, 0x200, v24'); a('v_cmp_eq_u32 vcc, 0x200, v24'); a('v_mov_b32 v25, 0x100'); a('s_nop 0'); a('v_cndmask_b32 v24, v24, v25, vcc')
    a.lab('K1_WD_A')
    a('v_lshlrev_b32 v24, 1, v24'); a('v_lshl_add_u32 v24, v13, 12, v24')
    a('s_lshl_b32 s30, s30, 14'); a('s_add_u32 s31, s30, 8192')
    def gather(z):
        g,i=z>>2,z&3
        a(f'buffer_load_ushort v{16+4*g+i}, v24, s[24:27], s{30+g} offen offset:{1024*i}')
    a('s_lshl_b32 s66, s28, 3'); a('s_add_u32 s66, s66, s7'); a('s_lshl_b32 s66, s66, 10'); a(f's_add_u32 s66, s66, {WF}')
    def main(dft,tag):
        def reads(i):
            st,kk=i>>2,i&3; buf=32+16*(i&1)
            if kk==0:
                a(f'v_add_u32 v2, {RB[st]}, v27'); a(f'v_add_u32 v3, {RB[st]}, v28')
            for part in range(2):
                for t in range(2):
                    for half in range(2):
                        r=buf+8*part+4*t+2*half
                        a(f'ds_read_b64_tr_b16 v[{r}:{r+1}], v{2+t} offset:{part*16384+kk*4096+half*1024}')
        reads(0)
        for i in range(32):
            st,kk=i>>2,i&3; buf=32+16*(i&1)
            a('s_waitcnt lgkmcnt(0)')
            if kk==3 and st<7:
                n=7
                a(f's_waitcnt vmcnt({n})'); a('s_barrier')
            if i in (4,31) and not dft: a.stamp()
            if i<31: reads(i+1)
            if i<20: dma1(3+(i>>2),RB[3+(i>>2)],i&3)
            elif i<28: gather(i-20)
            if dft:
                for q in range(4): a(f'v_xor_b32 v{buf+q}, v29, v{buf+q}')
            order=(1,2,3,0) if dft else (0,1,2,3)
            for f in order:
                acc=64+16*f; w=f'v[{buf+4*f}:{buf+4*f+3}]'; x=f'v[{128+4*i}:{131+4*i}]'
                c='0' if i==0 else f'v[{acc}:{acc+15}]'
                if dft: a(f'v_mfma_f32_32x32x16_bf16 v[{acc}:{acc+15}], {x}, {w}, {c}')
                else:   a(f'v_mfma_f32_32x32x16_bf16 v[{acc}:{acc+15}], {w}, {x}, {c}')
    def wdstore(tag):
        a('s_waitcnt vmcnt(0)')
        for q in range(4): a(f'v_lshl_or_b32 v{4+q}, v{17+2*q}, 16, v{16+2*q}')
        a('s_cmp_ge_u32 s2, 224'); a(f's_cbranch_scc1 K1_NOWD_{tag}')
        a(f'buffer_store_dwordx4 v[4:7], v14, s[32:35], s66 offen{SC}')
        a.lab(f'K1_NOWD_{tag}')
    a('s_cmp_eq_u32 s56, 1'); a('s_cbranch_scc1 K1_MAIN_DFT')
    main(False,'g')
    a('s_lshl_b32 s20, s5, 2'); a('s_add_u32 s20, s20, s72'); a('s_mul_i32 s20, s20, 114688')
    a('s_lshl_b32 s21, s6, 3'); a('s_lshl_b32 s22, s73, 2'); a('s_add_u32 s21, s21, s22'); a('s_lshl_b32 s21, s21, 10')
    a('s_add_u32 s20, s20, s21')
    wdstore('g')
    a('v_mul_f32 v15, v15, v15'); a('s_nop 7')
    for t in range(2):
        g=64+16*t; u=96+16*t
        for r in range(16):
            a(f'v_max_f32 v{g+r}, 0, v{g+r}'); a(f'v_mul_f32 v{u+r}, v15, v{u+r}'); a(f'v_mul_f32 v{g+r}, v{g+r}, v{u+r}')
        for q in range(8): a(f'v_cvt_pk_bf16_f32 v{32+8*t+q}, v{g+2*q}, v{g+2*q+1}')
        a(f'buffer_store_dwordx4 v[{32+8*t}:{35+8*t}], v14, s[32:35], s20 offen offset:{2048*t}{SC}')
        a(f'buffer_store_dwordx4 v[{36+8*t}:{39+8*t}], v14, s[32:35], s20 offen offset:{2048*t+1024}{SC}')
    a.stamp(); a('s_waitcnt vmcnt(0)'); a.stamp(); a.stamp_out(0)
    a('s_endpgm')
    a.lab('K1_MAIN_DFT')
    main(True,'d')
    a('s_lshr_b32 s20, s72, 1'); a('s_lshl_b32 s21, s20, 19')
    a('s_lshr_b32 s22, s58, 8'); a('s_lshl_b32 s22, s22, 2'); a('s_lshl_b32 s23, s73, 1'); a('s_add_u32 s22, s22, s23')
    a('s_lshl_b32 s23, s22, 16'); a('s_add_u32 s21, s21, s23')
    a('s_lshl_b32 s23, s5, 2'); a('s_and_b32 s24, s72, 1'); a('s_lshl_b32 s24, s24, 1'); a('s_add_u32 s23, s23, s24'); a('s_lshl_b32 s23, s23, 10')
    a('s_add_u32 s21, s21, s23'); a(f's_add_u32 s21, s21, {AF}'); a('s_add_u32 s25, s21, 65536')
    wdstore('d')
    a('s_nop 7'); a('s_nop 7')
    a('s_lshl_b32 s24, s5, 2'); a('s_add_u32 s24, s24, s72'); a('s_cmp_eq_u32 s24, 2'); a('s_cbranch_scc0 K1_NO1024')
    a('s_lshl_b32 s24, s22, 7'); a(f's_add_u32 s24, s24, {A1024}')
    a('v_lshlrev_b32 v2, 2, v1'); a('v_cmp_gt_u32 vcc, 32, v1'); a('s_and_saveexec_b64 s[26:27], vcc')
    a('buffer_store_dword v64, v2, s[32:35], s24 offen'); a('buffer_store_dword v80, v2, s[32:35], s24 offen offset:128')
    a('s_mov_b64 exec, s[26:27]')
    a.lab('K1_NO1024')
    a('s_cmp_eq_u32 s20, 0'); a('s_cbranch_scc1 K1_EP_AE')
    for r in range(32): a(f'v_mov_b32 v{64+r}, v{96+r}')
    a.lab('K1_EP_AE')
    for t in range(2):
        g=64+16*t
        for q in range(8): a(f'v_cvt_pk_bf16_f32 v{32+8*t+q}, v{g+2*q}, v{g+2*q+1}')
        so='s21' if t==0 else 's25'
        a(f'buffer_store_dwordx4 v[{32+8*t}:{35+8*t}], v14, s[32:35], {so} offen{SC}')
        a(f'buffer_store_dwordx4 v[{36+8*t}:{39+8*t}], v14, s[32:35], {so} offen offset:1024{SC}')
    a.stamp_out(0) if False else None
    if STAMP is not None:
        a('s_waitcnt vmcnt(0)'); a('s_memrealtime s[100:101]'); a('s_load_dwordx2 s[6:7], s[0:1], 80'); a('s_waitcnt lgkmcnt(0)')
        a('v_cmp_eq_u32 vcc, 0, v0'); a('s_and_saveexec_b64 s[4:5], vcc'); a('s_cbranch_execz K1_END')
        a('s_lshl_b32 s8, s2, 4'); a('s_add_u32 s8, s8, 1024'); a('v_mov_b32 v2, s8')
        a('v_mov_b32 v4, s98'); a('v_mov_b32 v5, s99'); a('v_mov_b32 v6, s100'); a('v_mov_b32 v7, s101')
        a('global_store_dwordx4 v2, v[4:7], s[6:7]')
    a.lab('K1_END')
    a('s_endpgm')
    return K,a.txt()
```

```python
from gen1 import *
import gen1
def STAMPON(): return gen1.STAMP is not None
def k2(NW=12,ROT=False,MAP=0):
    a=Asm()
    K='fnet_k2_kernel'
    a.l.append(f'.globl {K}\n.p2align 8\n.type {K},@function\n{K}:')
    a('s_cmp_ge_u32 s2, 256'); a('s_cbranch_scc1 K2_END')
    a.stamp()
    a('s_load_dwordx2 s[36:37], s[0:1], 0')
    a('s_load_dwordx2 s[38:39], s[0:1], 72')
    a('s_load_dwordx2 s[40:41], s[0:1], 88')
    a('s_and_b32 s3, s2, 7'); a('s_lshr_b32 s4, s2, 3')
    a('s_lshr_b32 s5, s3, 1'); a('s_lshl_b32 s5, s5, 3'); a('s_and_b32 s6, s4, 7'); a('s_add_u32 s5, s5, s6')
    a('s_and_b32 s6, s3, 1'); a('s_lshl_b32 s6, s6, 2'); a('s_lshr_b32 s7, s4, 3'); a('s_add_u32 s6, s6, s7')
    if MAP==1:
        a('s_lshl_b32 s5, s3, 2'); a('s_and_b32 s6, s4, 3'); a('s_add_u32 s5, s5, s6'); a('s_lshr_b32 s6, s4, 2')
    a('v_and_b32 v1, 63, v0'); a('v_lshrrev_b32 v2, 6, v0'); a('s_nop 0'); a('v_readfirstlane_b32 s7, v2')
    a('v_lshlrev_b32 v3, 4, v1')
    a('v_and_b32 v4, 31, v1'); a('v_lshrrev_b32 v5, 5, v1')
    a('s_mul_i32 s44, s5, 229376'); a('s_mul_i32 s20, s7, 28672'); a('s_add_u32 s44, s44, s20'); a('s_add_u32 s45, s44, 114688')
    a('s_mul_i32 s46, s6, 229376'); a('s_add_u32 s46, s46, s20'); a(f's_add_u32 s46, s46, {WF}'); a('s_add_u32 s47, s46, 114688')
    a('s_lshl_b32 s21, s7, 14')
    a('s_lshl_b32 s49, s6, 16'); a('s_add_u32 s49, s49, s21'); a(f's_add_u32 s49, s49, {AF}'); a(f's_add_u32 s51, s49, {8*65536}')
    a('s_and_b32 s52, s4, 7'); a('s_lshr_b32 s53, s4, 3'); a('s_lshl_b32 s53, s53, 1'); a('s_add_u32 s52, s52, s53')
    a('s_cmp_ge_u32 s52, 7'); a('s_cselect_b32 s53, 7, 0'); a('s_sub_u32 s52, s52, s53')
    a('s_cmp_ge_u32 s52, 7'); a('s_cselect_b32 s53, 7, 0'); a('s_sub_u32 s52, s52, s53')
    if not ROT: a("s_mov_b32 s52, 0")
    a("s_lshl_b32 s53, s52, 12")
    for r in (44,45,46,47): a(f's_add_u32 s{r}, s{r}, s53')
    a('s_mov_b32 s54, 4096')
    a('s_waitcnt lgkmcnt(0)')
    srd(a,8,40,WSZ); srd(a,12,36,2048*1024); srd(a,16,38,2048*1024)
    steps=[]; d=0; f=0
    for i in range(44):
        if f<16 and (d*16>=f*28+14 or d==28): steps.append(('f',f)); f+=1
        else: steps.append(('d',d)); d+=1
    left={}
    def loads(i):
        kind,k=steps[i]; base=64+16*(i%NW)
        regs=(44,45,46,47) if kind=='d' else (49,51)
        for q,sr in enumerate(regs):
            a(f'buffer_load_dwordx4 v[{base+4*q}:{base+4*q+3}], v3, s[8:11], s{sr} offen offset:{(k&3)*1024}')
        if (k&3)==3:
            if kind=='d':
                a(f's_cmp_eq_u32 s52, {6-(k>>2)}'); a('s_cselect_b32 s55, -24576, s54')
                for sr in regs: a(f's_add_u32 s{sr}, s{sr}, s55')
            else:
                for sr in regs: a(f's_add_u32 s{sr}, s{sr}, 4096')
    for i in range(NW): loads(i)
    a('s_lshr_b32 s22, s7, 1'); a('s_and_b32 s23, s7, 1')
    a('s_lshl_b32 s24, s5, 5'); a('v_lshl_add_u32 v6, v5, 2, s24')
    a('s_lshl_b32 s24, s6, 5'); a('v_add_u32 v7, s24, v4')
    a('s_cmp_eq_u32 s23, 0'); a('s_cbranch_scc1 K2_COLA')
    a('v_sub_u32 v7, 0x200, v7'); a('v_cmp_eq_u32 vcc, 0x200, v7'); a('v_mov_b32 v8, 0x100'); a('s_nop 0'); a('v_cndmask_b32 v7, v7, v8, vcc')
    a.lab('K2_COLA')
    a('s_mov_b32 s25, 1024')
    a('s_cmp_eq_u32 s22, 0'); a('s_cbranch_scc1 K2_ROWA')
    a('v_sub_u32 v6, 0x800, v6'); a('s_mov_b32 s25, -1024')
    a.lab('K2_ROWA')
    a('v_lshlrev_b32 v6, 10, v6'); a('v_lshl_add_u32 v6, v7, 1, v6')
    for r in range(16):
        a(f'v_mov_b32 v8, {8*(r>>2)+(r&3)}'); a(f'v_mad_i32_i24 v{16+r}, v8, s25, v6')
    a('v_cmp_le_u32 vcc, 0x200000, v16'); a('v_subrev_u32 v8, 0x100000, v16'); a('s_nop 0'); a('v_cndmask_b32 v16, v16, v8, vcc')
    a('s_mov_b64 s[30:31], vcc')
    for r in range(16): a(f'buffer_load_ushort v{32+r}, v{16+r}, s[12:15], 0 offen')
    a('s_lshl_b32 s24, s6, 7'); a(f's_add_u32 s24, s24, {A1024}'); a('v_lshlrev_b32 v8, 2, v4')
    a('buffer_load_dword v9, v8, s[8:11], s24 offen')
    a('v_mov_b32 v12, 0xbf803f80'); a('v_mov_b32 v13, v12'); a('v_mov_b32 v14, v12'); a('v_mov_b32 v15, v12')
    extra=17
    a('s_lshl_b32 s24, s5, 5'); a('v_add_u32 v2, s24, v4'); a('v_cvt_f32_u32 v2, v2'); a('v_mul_f32 v2, 0x3a000000, v2')
    a('s_lshl_b32 s24, s7, 8'); a('v_lshl_add_u32 v6, v5, 2, s24')
    for q,dl in enumerate((0,1,2,3,8,9,10,11)):
        a(f'v_add_u32 v7, {dl}, v6'); a('v_cvt_f32_u32 v7, v7'); a(f'v_mul_f32 v{48+q}, v2, v7'); a(f'v_fract_f32 v{48+q}, v{48+q}')
    a('v_mul_f32 v11, 0x41800000, v2'); a('v_fract_f32 v11, v11')
    def gen():
        tc=(2,6,7,8);
        for h in range(2):
            for q in range(4): a(f'v_cos_f32 v{tc[q]}, v{48+4*h+q}')
            a(f'v_sin_f32_e64 v10, -v{48+4*h}')
            a(f'v_cvt_pk_bf16_f32 v{56+2*h}, v2, v6'); a(f'v_cvt_pk_bf16_f32 v{57+2*h}, v7, v8')
            a(f'v_sin_f32_e64 v6, -v{49+4*h}'); a(f'v_sin_f32_e64 v7, -v{50+4*h}'); a(f'v_sin_f32_e64 v8, -v{51+4*h}')
            a(f'v_add_f32 v{48+4*h}, v11, v{48+4*h}')
            a(f'v_cvt_pk_bf16_f32 v{60+2*h}, v10, v6'); a(f'v_cvt_pk_bf16_f32 v{61+2*h}, v7, v8')
            for q in range(1,4): a(f'v_add_f32 v{48+4*h+q}, v11, v{48+4*h+q}')
            for q in range(4): a(f'v_fract_f32 v{48+4*h+q}, v{48+4*h+q}')
    gen()
    def nl(i): return 4 if steps[i][0]=='d' else 2
    first={}
    def mf(acc,x,y):
        c=f'a[{acc}:{acc+15}]' if acc in first else '0'
        first[acc]=1
        a(f'v_mfma_f32_32x32x16_bf16 a[{acc}:{acc+15}], v[{x}:{x+3}], v[{y}:{y+3}], {c}')
    for i in range(44):
        kind,k=steps[i]; base=64+16*(i%NW)
        later=sum(nl(z) for z in range(i+1,min(i+NW,44)))
        if i<NW: later+=extra
        n=later
        a(f's_waitcnt vmcnt({min(n,63)})')
        if i in (0,11,22,33,43): a.stamp()
        if kind=='d':
            mf(0,base,base+8); mf(16,base,base+12); mf(32,base+4,base+8); mf(48,base+4,base+12)
        else:
            mf(64,56,base); mf(80,60,base+4); mf(96,12,base)
            if k<15:
                if i+NW<44: loads(i+NW)
                gen(); continue
        if i+NW<44: loads(i+NW)
    a('s_nop 7'); a('s_nop 7')
    for r in range(16):
        a(f'v_accvgpr_read_b32 v{64+r}, a{64+r}'); a(f'v_accvgpr_read_b32 v{96+r}, a{80+r}')
        a(f'v_add_f32 v{80+r}, v{64+r}, v{96+r}'); a(f'v_sub_f32 v{64+r}, v{64+r}, v{96+r}')
    a('s_mul_i32 s26, s7, 24832'); a('v_add_u32 v10, s26, v3')
    for t in range(4):
        for q in range(4): a(f'ds_write_b128 v10, a[{16*t+4*q}:{16*t+4*q+3}] offset:{t*4096+q*1024}')
    for t in range(2):
        for q in range(4): a(f'ds_write_b128 v10, v[{64+16*t+4*q}:{64+16*t+4*q+3}] offset:{(4+t)*4096+q*1024}')
    a('v_lshlrev_b32 v11, 2, v1'); a('v_add_u32 v11, s26, v11'); a('v_accvgpr_read_b32 v8, a96')
    a('ds_write_b32 v11, v8 offset:24576')
    a('s_waitcnt lgkmcnt(0)'); a('s_barrier'); a.stamp()
    a('s_lshl_b32 s27, s7, 12'); a('v_add_u32 v10, s27, v3')
    a('s_xor_b32 s27, s22, s23'); a('s_add_u32 s27, s27, 4'); a('s_lshl_b32 s27, s27, 12'); a('v_add_u32 v11, s27, v3')
    a('v_add_u32 v6, 49664, v10'); a('v_add_u32 v7, 49664, v11')
    for sw in range(4):
        rb=10 if sw<2 else 6; ry=11 if sw<2 else 7; o=(sw&1)*24832
        for q in range(4): a(f'ds_read_b128 v[{64+16*sw+4*q}:{67+16*sw+4*q}], v{rb} offset:{o+q*1024}')
        for q in range(4): a(f'ds_read_b128 v[{128+16*sw+4*q}:{131+16*sw+4*q}], v{ry} offset:{o+q*1024}')
    a('v_lshlrev_b32 v8, 2, v4'); a('v_add_u32 v2, 49664, v8')
    a('ds_read_b32 v48, v8 offset:24576'); a(f'ds_read_b32 v49, v8 offset:{24576+24832}')
    a('ds_read_b32 v50, v2 offset:24576'); a(f'ds_read_b32 v51, v2 offset:{24576+24832}')
    a('s_waitcnt lgkmcnt(0)')
    for r in range(16):
        a(f'v_add_f32 v{64+r}, v{64+r}, v{80+r}'); a(f'v_add_f32 v{96+r}, v{96+r}, v{112+r}')
        a(f'v_add_f32 v{128+r}, v{128+r}, v{144+r}'); a(f'v_add_f32 v{160+r}, v{160+r}, v{176+r}')
        a(f'v_add_f32 v{64+r}, v{64+r}, v{96+r}'); a(f'v_add_f32 v{128+r}, v{128+r}, v{160+r}')
        if r&1: a(f'v_sub_f32 v{128+r}, v{128+r}, v9')
        else:   a(f'v_add_f32 v{128+r}, v{128+r}, v9')
    a('v_add_f32 v48, v48, v49'); a('v_add_f32 v50, v50, v51'); a('v_add_f32 v48, v48, v50'); a('v_add_f32 v48, v48, v9')
    a('v_cndmask_b32 v128, v128, v48, s[30:31]')
    a('s_or_b32 s27, s6, s23'); a('v_or_b32 v8, s27, v4'); a('v_cmp_eq_u32 vcc, 0, v8'); a('v_mov_b32 v2, 0'); a('s_nop 0')
    a('s_cbranch_vccz K2_NOCOL')
    for r in range(16): a(f'v_cndmask_b32 v{128+r}, v{128+r}, v2, vcc')
    a.lab('K2_NOCOL')
    a('s_mov_b32 s28, 0xbfb8aa3b')
    for r in range(16): a(f'v_mul_f32 v{96+r}, s28, v{64+r}')
    for r in range(16): a(f'v_exp_f32 v{96+r}, v{96+r}')
    for r in range(16): a(f'v_add_f32 v{96+r}, 1.0, v{96+r}')
    for r in range(16): a(f'v_rcp_f32 v{96+r}, v{96+r}')
    for r in range(16): a(f'v_mul_f32 v{64+r}, v{64+r}, v{128+r}')
    for r in range(16): a(f'v_lshlrev_b32 v{32+r}, 16, v{32+r}')
    for r in range(16): a(f'v_fma_f32 v{64+r}, v{64+r}, v{96+r}, v{32+r}')
    for r in range(16): a(f'v_cvt_pk_bf16_f32 v{64+r}, v{64+r}, v{64+r}')
    for r in range(16): a(f'buffer_store_short v{64+r}, v{16+r}, s[16:19], 0 offen')
    a.stamp()
    if STAMPON(): a('s_waitcnt vmcnt(0)')
    a.stamp(); a.stamp_out(1)
    a.lab('K2_END')
    a('s_endpgm')
    return K,a.txt()
```

```python
HF=0; WF=0x700000; CF=0x8C0000; AF=0xCC0000; A1024=0xDC0000; WSZ=0xDC0400
STAMP=None
class Asm:
    def __init__(s): s.l=[]; s.ns=0
    def stamp(s):
        if STAMP is None: return
        if s.ns==0: s('s_memrealtime s[98:99]')
        s(f's_memtime s[{74+2*s.ns}:{75+2*s.ns}]'); s.ns+=1
    def stamp_out(s,k):
        if STAMP is None: return
        s.uid=getattr(s,'uid',0)+1
        L=f'ST_{k}_{s.uid}'
        s('s_memrealtime s[100:101]'); s('s_load_dwordx2 s[6:7], s[0:1], 80'); s('s_waitcnt lgkmcnt(0)')
        s('v_cmp_eq_u32 vcc, 0, v0'); s('s_and_saveexec_b64 s[4:5], vcc'); s(f's_cbranch_execz {L}')
        s(f's_lshl_b32 s8, s2, 4'); s(f's_add_u32 s8, s8, {1024+4096*k}'); s('v_mov_b32 v2, s8')
        s('v_mov_b32 v4, s98'); s('v_mov_b32 v5, s99'); s('v_mov_b32 v6, s100'); s('v_mov_b32 v7, s101')
        s('global_store_dwordx4 v2, v[4:7], s[6:7]')
        s(f's_cmp_eq_u32 s2, {STAMP}'); s(f's_cbranch_scc0 {L}')
        s('v_cmp_eq_u32 vcc, 0, v0'); s('s_and_saveexec_b64 s[4:5], vcc'); s(f's_cbranch_execz {L}')
        s('s_load_dwordx2 s[6:7], s[0:1], 80'); s('s_waitcnt lgkmcnt(0)')
        s(f'v_mov_b32 v2, {128*k}')
        for i in range(s.ns):
            s(f'v_mov_b32 v4, s{74+2*i}'); s(f'v_mov_b32 v5, s{75+2*i}')
            s(f'global_store_dwordx2 v2, v[4:5], s[6:7] offset:{8*i}')
        s.lab(L)
    def __call__(s,x): s.l.append('    '+x)
    def lab(s,x): s.l.append(x+':')
    def txt(s): return '\n'.join(s.l)+'\n'

def srd(a,reg,ptr,size):
    a(f's_mov_b32 s{reg}, s{ptr}'); a(f's_and_b32 s{reg+1}, s{ptr+1}, 0xffff')
    a(f's_mov_b32 s{reg+2}, {hex(size)}'); a(f's_mov_b32 s{reg+3}, 0x20000')

def mirror_row(a,dst,tmp):
    a(f'v_sub_u32 v{dst}, 0x800, v{dst}')
    a(f'v_cmp_eq_u32 vcc, 0x800, v{dst}')
    a(f'v_mov_b32 v{tmp}, 0x400'); a('s_nop 0')
    a(f'v_cndmask_b32 v{dst}, v{dst}, v{tmp}, vcc')

def k1(SC=''):
    a=Asm()
    K='fnet_k1_kernel'
    a.l.append(f'.globl {K}\n.p2align 8\n.type {K},@function\n{K}:')
    a('s_cmp_ge_u32 s2, 256'); a('s_cbranch_scc1 K1_END')
    a.stamp()
    a('s_load_dwordx4 s[36:39], s[0:1], 0')
    a('s_load_dwordx4 s[40:43], s[0:1], 16')
    a('s_load_dwordx2 s[44:45], s[0:1], 32')
    a('s_load_dwordx4 s[48:51], s[0:1], 48')
    a('s_load_dwordx2 s[52:53], s[0:1], 64')
    a('s_load_dwordx2 s[54:55], s[0:1], 88')
    a('s_and_b32 s3, s2, 7'); a('s_lshr_b32 s4, s2, 3')
    a('s_and_b32 s5, s3, 1'); a('s_lshl_b32 s5, s5, 3'); a('s_and_b32 s6, s4, 7'); a('s_add_u32 s5, s5, s6')
    a('s_lshr_b32 s6, s3, 1'); a('s_lshl_b32 s6, s6, 2'); a('s_lshr_b32 s7, s4, 3'); a('s_add_u32 s6, s6, s7')
    a('v_and_b32 v1, 63, v0')
    a('v_lshrrev_b32 v2, 6, v0')
    a('s_nop 0')
    a('v_readfirstlane_b32 s7, v2')
    a('s_cmp_ge_u32 s6, 14'); a('s_cselect_b32 s56, 1, 0')
    a('v_lshrrev_b32 v3, 3, v1')
    a('v_and_b32 v4, 7, v1')
    a('s_cmp_eq_u32 s56, 1'); a('s_cbranch_scc1 K1_ROWS_DFT')
    a('s_lshr_b32 s8, s7, 1'); a('s_lshl_b32 s9, s5, 2'); a('s_add_u32 s8, s8, s9')
    a('s_and_b32 s9, s7, 1'); a('s_lshl_b32 s9, s9, 4')
    a('s_lshr_b32 s10, s8, 1'); a('s_lshl_b32 s10, s10, 5'); a('s_add_u32 s9, s9, s10')
    a('v_add_u32 v5, s9, v3'); a('v_add_u32 v6, 8, v5')
    a('s_and_b32 s8, s8, 1'); a('s_cmp_eq_u32 s8, 0'); a('s_cbranch_scc1 K1_ROWS_A')
    mirror_row(a,5,7); mirror_row(a,6,7)
    a.lab('K1_ROWS_A')
    a('s_lshl_b32 s9, s7, 4'); a('v_add_u32 v7, s9, v3'); a('v_add_u32 v8, 8, v7')
    a('s_branch K1_ROWS_DONE')
    a.lab('K1_ROWS_DFT')
    a('s_lshl_b32 s9, s5, 6'); a('s_lshl_b32 s10, s7, 3'); a('s_add_u32 s9, s9, s10')
    a('v_add_u32 v5, s9, v3'); a('v_mov_b32 v6, v5')
    mirror_row(a,6,7)
    a('v_add_u32 v7, s10, v3'); a('v_add_u32 v8, 64, v7')
    a.lab('K1_ROWS_DONE')
    a('v_lshlrev_b32 v9, 4, v4')
    a('v_lshl_add_u32 v5, v5, 10, v9'); a('v_lshl_add_u32 v6, v6, 10, v9')
    for R in (7,8):
        a(f'v_and_b32 v10, 15, v{R}'); a('v_xor_b32 v10, v10, v4'); a('v_lshlrev_b32 v10, 4, v10')
        a(f'v_lshl_add_u32 v{R}, v{R}, 9, v10')
    a('s_waitcnt lgkmcnt(0)')
    srd(a,8,36,2048*1024)
    srd(a,32,54,WSZ)
    for jj in range(8): a(f'buffer_load_dwordx4 v[{64+4*jj}:{67+4*jj}], v5, s[8:11], 0 offen offset:{128*jj}')
    for jj in range(8): a(f'buffer_load_dwordx4 v[{96+4*jj}:{99+4*jj}], v6, s[8:11], 0 offen offset:{128*jj}')
    a('s_cmp_eq_u32 s56, 1')
    a('s_cselect_b32 s48, s42, s48'); a('s_cselect_b32 s49, s43, s49')
    a('s_cselect_b32 s50, s44, s50'); a('s_cselect_b32 s51, s45, s51')
    a('s_mov_b32 s57, 3584'); a('s_mov_b32 s59, 0x1C0000')
    a('s_cselect_b32 s57, 1024, s57')
    a('s_cselect_b32 s59, 0x80000, s59')
    srd(a,12,48,0); srd(a,16,50,0)
    a('s_mov_b32 s14, s59'); a('s_mov_b32 s18, s59')
    a('s_sub_u32 s58, s6, 14'); a('s_cmp_eq_u32 s56, 1'); a('s_cselect_b32 s58, s58, s6'); a('s_lshl_b32 s58, s58, 8')
    a('v_lshrrev_b32 v10, 4, v1'); a('s_lshl_b32 s20, s7, 3'); a('v_add_u32 v11, s20, v10')
    a('v_mul_lo_u32 v11, v11, s57')
    a('v_lshlrev_b32 v10, 2, v10'); a('v_and_b32 v12, 15, v1'); a('v_xor_b32 v10, v10, v12')
    a('v_lshl_add_u32 v11, v10, 4, v11'); a('v_add_u32 v11, s58, v11')
    a('s_lshl_b32 s60, s57, 2')
    a('s_lshl_b32 s61, s57, 6')
    a('s_lshl_b32 s62, s7, 11')
    def dma1(stage,rb,idx):
        part,q=idx>>1,idx&1; sr=(12,16)[part]
        a(f's_mul_i32 s63, s61, {stage}')
        if q: a('s_add_u32 s63, s63, s60')
        a(f's_add_u32 m0, s62, {rb+part*16384+q*1024}'); a('s_nop 0')
        a(f'buffer_load_dwordx4 v11, s[{sr}:{sr+3}], s63 offen lds')
    def dma(stage,rb):
        a(f's_mul_i32 s63, s61, {stage}'); a('s_add_u32 s64, s63, s60')
        for part,sr in ((0,12),(1,16)):
            for q in range(2):
                a(f's_add_u32 m0, s62, {rb+part*16384+q*1024}')
                a('s_nop 0')
                a(f'buffer_load_dwordx4 v11, s[{sr}:{sr+3}], s{63+q} offen lds')
    dma(0,65536)
    a('v_and_b32 v12, 31, v1'); a('v_lshrrev_b32 v13, 5, v1')
    M4='v_mfma_f32_4x4x4_16b_bf16'
    a('v_mov_b32 v48, 0x3f803f80'); a('v_mov_b32 v49, v48')
    a('v_and_b32 v2, 1, v1'); a('v_cmp_eq_u32 s[20:21], 1, v2'); a('v_and_b32 v2, 2, v1'); a('v_cmp_eq_u32 s[22:23], 2, v2')
    a('v_xor_b32 v5, 128, v7'); a('v_xor_b32 v6, 128, v8')
    a('v_mov_b32 v16, 0'); a('v_mov_b32 v18, 0'); a('s_mov_b32 s67, 0x3f803f80')
    for row,(base,S,Q) in enumerate(((64,16,132),(96,18,140))):
        a(f's_waitcnt vmcnt({12 if row==0 else 4})')
        if row==1:
            a.stamp(); dma(1,98304)
        for p in range(16):
            x=f'v[{base+2*p}:{base+2*p+1}]'
            cQ='0' if p==0 else f'v[{Q}:{Q+3}]'
            a(f'{M4} v[{Q}:{Q+3}], {x}, {x}, {cQ}')
            a(f'v_dot2_f32_bf16 v{S}, v{base+2*p}, s67, v{S}'); a(f'v_dot2_f32_bf16 v{S}, v{base+2*p+1}, s67, v{S}')
    a('s_nop 4')
    for (Q,d) in ((132,17),(140,19)):
        a(f'v_cndmask_b32 v2, v{Q}, v{Q+1}, s[20:21]'); a(f'v_cndmask_b32 v4, v{Q+2}, v{Q+3}, s[20:21]')
        a(f'v_cndmask_b32 v{d}, v2, v4, s[22:23]')
    a('s_nop 1')
    for ctl in ('quad_perm:[1,0,3,2]','quad_perm:[2,3,0,1]','row_half_mirror'):
        for r in (16,17,18,19):
            a(f'v_add_f32_dpp v{r}, v{r}, v{r} {ctl} row_mask:0xf bank_mask:0xf')
        a('s_nop 1')
    a('s_mov_b32 s68, 0x3b000000')
    a('s_mov_b32 s69, 0x3727c5ac')
    for (sm,sq,rr,mm) in ((16,17,56,57),(18,19,58,59)):
        a(f'v_mul_f32 v{sm}, s68, v{sm}')
        a(f'v_mul_f32 v{sq}, s68, v{sq}')
        a(f'v_fma_f32 v{sq}, -v{sm}, v{sm}, v{sq}')
        a(f'v_max_f32 v{sq}, 0, v{sq}')
        a(f'v_add_f32 v{sq}, s69, v{sq}')
        a(f'v_rsq_f32 v{rr}, v{sq}')
        a('s_nop 0')
        a(f'v_sub_f32 v{mm}, 0, v{sm}')
    a('v_and_b32 v2, 1, v1'); a('v_lshlrev_b32 v60, 4, v2'); a('v_mov_b32 v61, 0'); a('v_mov_b32 v2, 0x3f80')
    a('v_lshlrev_b32 v2, v60, v2'); a('v_cndmask_b32 v16, v2, v61, s[22:23]'); a('v_cndmask_b32 v17, v61, v2, s[22:23]')
    for q in range(4): a(f'v_mov_b32 v{48+q}, v57'); a(f'v_mov_b32 v{52+q}, v59')
    def wr(jj):
        for (base,ae,ao) in ((64,7,5),(96,8,6)):
            ad=ao if jj&1 else ae
            a(f'ds_write_b128 v{ad}, v[{base+4*jj}:{base+3+4*jj}] offset:{((jj&3)>>1)*256}')
    def cvt(jj,dft):
        D=128+16*(jj&1)
        if dft:
            for h in range(4):
                u=f'v[{D+2*h}:{D+2*h+1}]'; v=f'v[{D+8+2*h}:{D+8+2*h+1}]'
                a(f'v_pk_mul_f32 v[32:33], {u}, v[20:21] op_sel_hi:[1,0]'); a(f'v_pk_mul_f32 v[34:35], {u}, v[24:25] op_sel_hi:[1,0]')
                a(f'v_pk_fma_f32 v[32:33], {v}, v[22:23], v[32:33] op_sel_hi:[1,0,1]'); a(f'v_pk_fma_f32 v[34:35], {v}, v[26:27], v[34:35] op_sel_hi:[1,0,1]')
                a(f'v_cvt_pk_bf16_f32 v{64+4*jj+h}, v32, v33'); a(f'v_cvt_pk_bf16_f32 v{96+4*jj+h}, v34, v35')
        else:
            for g in range(4):
                base=(64 if g<2 else 96)+4*jj+2*(g&1)
                a(f'v_cvt_pk_bf16_f32 v{base}, v{D+4*g}, v{D+4*g+1}'); a(f'v_cvt_pk_bf16_f32 v{base+1}, v{D+4*g+2}, v{D+4*g+3}')
        if jj<4: wr(jj)
    def norm(dft):
        for jj in range(9):
            if jj<8:
                D=128+16*(jj&1)
                for g in range(4):
                    xb=(64 if g<2 else 96)+4*jj+2*(g&1)
                    a(f'{M4} v[{D+4*g}:{D+4*g+3}], v[16:17], v[{xb}:{xb+1}], v[{48+4*(g>>1)}:{51+4*(g>>1)}]')
                if jj==0: a('s_nop 4')
            else: a('s_nop 4')
            if jj>0: cvt(jj-1,dft)
    a('s_nop 1')
    a('s_cmp_eq_u32 s56, 1'); a('s_cbranch_scc1 K1_NORM_DFT')
    a('s_lshl_b32 s71, s7, 6'); a('s_add_u32 s71, s71, 131072'); a('v_lshl_add_u32 v2, v3, 2, s71')
    a('ds_write_b32 v2, v56'); a('ds_write_b32 v2, v58 offset:32')
    norm(False)
    a('s_branch K1_NORM_DONE')
    a.lab('K1_NORM_DFT')
    a('s_lshl_b32 s71, s5, 3'); a('s_add_u32 s71, s71, s7')
    a('v_or_b32 v30, s71, v3'); a('v_cmp_eq_u32 vcc, 0, v30')
    a('v_mov_b32 v62, 1.0'); a('v_mov_b32 v63, -1.0')
    a('v_cndmask_b32 v30, v62, v61, vcc'); a('v_cndmask_b32 v31, v63, v62, vcc')
    a('v_mov_b32 v20, v56'); a('v_mul_f32 v22, v30, v58'); a('v_mul_f32 v24, v30, v56'); a('v_mul_f32 v26, v31, v58')
    norm(True)
    a.lab('K1_NORM_DONE')
    a.stamp()
    a('v_lshlrev_b32 v14, 4, v1')
    a('s_and_b32 s72, s7, 3'); a('s_lshr_b32 s73, s7, 2')
    a('s_lshl_b32 s20, s72, 5'); a('v_add_u32 v15, s20, v12')
    a('v_and_b32 v16, 15, v15'); a('v_xor_b32 v16, v16, v13'); a('v_lshlrev_b32 v16, 4, v16')
    a('v_lshl_add_u32 v15, v15, 9, v16')
    for m in range(8): a(f'v_xor_b32 v{16+m}, {32*m}, v15')
    a('s_waitcnt lgkmcnt(0)'); a.stamp(); a('s_barrier'); a.stamp()
    for ks in range(16):
        a(f'ds_read_b128 v[{128+4*ks}:{131+4*ks}], v{16+(ks&7)} offset:{(ks>>3)*256}')
    a('s_lshl_b32 s20, s72, 7'); a('s_add_u32 s20, s20, 131072'); a('v_lshl_add_u32 v2, v12, 2, s20'); a('ds_read_b32 v15, v2')
    a('v_lshrrev_b32 v24, 4, v1'); a('v_and_b32 v25, 15, v1'); a('v_lshrrev_b32 v26, 2, v25')
    a('v_lshrrev_b32 v27, 1, v24'); a('v_lshl_add_u32 v27, v27, 3, v26'); a('v_lshlrev_b32 v27, 8, v27')
    a('s_lshl_b32 s20, s73, 1'); a('v_xor_b32 v26, s20, v26'); a('v_lshl_add_u32 v27, v26, 6, v27')
    a('v_and_b32 v24, 1, v24'); a('v_lshl_add_u32 v27, v24, 5, v27')
    a('v_and_b32 v25, 3, v25'); a('v_lshl_add_u32 v27, v25, 3, v27')
    a('v_xor_b32 v28, 64, v27')
    a('s_or_b32 s20, s58, s73'); a('v_or_b32 v29, s20, v12'); a('v_cmp_eq_u32 vcc, 0, v29')
    a('v_mov_b32 v30, 0'); a('v_bfrev_b32 v31, 1'); a('v_cndmask_b32 v29, v30, v31, vcc')
    RB=[65536,98304,131072,65536,0,32768,98304,131072]
    srd(a,20+4,52,1792*1024)
    a('s_min_u32 s28, s2, 223'); a('s_mul_i32 s29, s28, 4682'); a('s_lshr_b32 s29, s29, 16')
    a('s_mul_i32 s30, s29, 14'); a('s_sub_u32 s30, s28, s30'); a('s_lshl_b32 s30, s30, 3'); a('s_add_u32 s30, s30, s7')
    a('s_lshr_b32 s31, s29, 1'); a('s_lshl_b32 s31, s31, 5')
    a('v_add_u32 v24, s31, v12')
    a('s_and_b32 s31, s29, 1'); a('s_cmp_eq_u32 s31, 0'); a('s_cbranch_scc1 K1_WD_A')
    a('v_sub_u32 v24, 0x200, v24'); a('v_cmp_eq_u32 vcc, 0x200, v24'); a('v_mov_b32 v25, 0x100'); a('s_nop 0'); a('v_cndmask_b32 v24, v24, v25, vcc')
    a.lab('K1_WD_A')
    a('v_lshlrev_b32 v24, 1, v24'); a('v_lshl_add_u32 v24, v13, 12, v24')
    a('s_lshl_b32 s30, s30, 14'); a('s_add_u32 s31, s30, 8192')
    def gather(z):
        g,i=z>>2,z&3
        a(f'buffer_load_ushort v{16+4*g+i}, v24, s[24:27], s{30+g} offen offset:{1024*i}')
    a('s_lshl_b32 s66, s28, 3'); a('s_add_u32 s66, s66, s7'); a('s_lshl_b32 s66, s66, 10'); a(f's_add_u32 s66, s66, {WF}')
    a('s_waitcnt vmcnt(4)'); a('s_waitcnt lgkmcnt(0)'); a.stamp(); a('s_barrier')
    a.stamp()
    dma(2,131072)
    DS={3:(3,0),4:(3,2),7:(4,0),8:(4,2),9:(5,0),10:(5,2),11:(6,0),12:(6,2),13:(7,0),14:(7,2)}
    VW={3:4,7:4,11:8,15:12,19:8,23:7,27:7}
    def main(dft,tag):
        def reads(i):
            st,kk=i>>2,i&3; buf=32+16*(i&1)
            if kk==0:
                a(f'v_add_u32 v2, {RB[st]}, v27'); a(f'v_add_u32 v3, {RB[st]}, v28')
            for part in range(2):
                for t in range(2):
                    for half in range(2):
                        r=buf+8*part+4*t+2*half
                        a(f'ds_read_b64_tr_b16 v[{r}:{r+1}], v{2+t} offset:{part*16384+kk*4096+half*1024}')
        reads(0)
        for jj in range(4,8): wr(jj)
        for i in range(32):
            st,kk=i>>2,i&3; buf=32+16*(i&1)
            a(f's_waitcnt lgkmcnt({8 if i==0 else 4 if i in (4,5,6) else 0})')
            if kk==3 and st<7:
                a(f's_waitcnt vmcnt({VW[i]})'); a('s_barrier')
            if i in (4,31) and not dft: a.stamp()
            if i<31: reads(i+1)
            if 3<=i<=6:
                for ks in range(16+4*(i-3),20+4*(i-3)):
                    a(f'ds_read_b128 v[{128+4*ks}:{131+4*ks}], v{16+(ks&7)} offset:{((ks&15)>>3)*256}')
            if i in DS:
                dma1(DS[i][0],RB[DS[i][0]],DS[i][1]); dma1(DS[i][0],RB[DS[i][0]],DS[i][1]+1)
            elif 20<=i<28: gather(i-20)
            if dft:
                for q in range(4): a(f'v_xor_b32 v{buf+q}, v29, v{buf+q}')
            order=(1,2,3,0) if dft else (0,1,2,3)
            for f in order:
                acc=64+16*f; w=f'v[{buf+4*f}:{buf+4*f+3}]'; x=f'v[{128+4*i}:{131+4*i}]'
                c='0' if i==0 else f'v[{acc}:{acc+15}]'
                if dft: a(f'v_mfma_f32_32x32x16_bf16 v[{acc}:{acc+15}], {x}, {w}, {c}')
                else:   a(f'v_mfma_f32_32x32x16_bf16 v[{acc}:{acc+15}], {w}, {x}, {c}')
    def wdstore(tag):
        a('s_waitcnt vmcnt(0)')
        for q in range(4): a(f'v_lshl_or_b32 v{4+q}, v{17+2*q}, 16, v{16+2*q}')
        a('s_cmp_ge_u32 s2, 224'); a(f's_cbranch_scc1 K1_NOWD_{tag}')
        a(f'buffer_store_dwordx4 v[4:7], v14, s[32:35], s66 offen{SC}')
        a.lab(f'K1_NOWD_{tag}')
    a('s_cmp_eq_u32 s56, 1'); a('s_cbranch_scc1 K1_MAIN_DFT')
    main(False,'g')
    a('s_lshl_b32 s20, s5, 2'); a('s_add_u32 s20, s20, s72'); a('s_mul_i32 s20, s20, 114688')
    a('s_lshl_b32 s21, s6, 3'); a('s_lshl_b32 s22, s73, 2'); a('s_add_u32 s21, s21, s22'); a('s_lshl_b32 s21, s21, 10')
    a('s_add_u32 s20, s20, s21')
    wdstore('g')
    a('v_mul_f32 v15, v15, v15'); a('s_nop 7')
    for t in range(2):
        g=64+16*t; u=96+16*t
        for r in range(16):
            a(f'v_max_f32 v{g+r}, 0, v{g+r}'); a(f'v_mul_f32 v{u+r}, v15, v{u+r}'); a(f'v_mul_f32 v{g+r}, v{g+r}, v{u+r}')
        for q in range(8): a(f'v_cvt_pk_bf16_f32 v{32+8*t+q}, v{g+2*q}, v{g+2*q+1}')
        a(f'buffer_store_dwordx4 v[{32+8*t}:{35+8*t}], v14, s[32:35], s20 offen offset:{2048*t}{SC}')
        a(f'buffer_store_dwordx4 v[{36+8*t}:{39+8*t}], v14, s[32:35], s20 offen offset:{2048*t+1024}{SC}')
    a.stamp(); a('s_waitcnt vmcnt(0)'); a.stamp(); a.stamp_out(0)
    a('s_endpgm')
    a.lab('K1_MAIN_DFT')
    main(True,'d')
    a('s_lshr_b32 s20, s72, 1'); a('s_lshl_b32 s21, s20, 19')
    a('s_lshr_b32 s22, s58, 8'); a('s_lshl_b32 s22, s22, 2'); a('s_lshl_b32 s23, s73, 1'); a('s_add_u32 s22, s22, s23')
    a('s_lshl_b32 s23, s22, 16'); a('s_add_u32 s21, s21, s23')
    a('s_lshl_b32 s23, s5, 2'); a('s_and_b32 s24, s72, 1'); a('s_lshl_b32 s24, s24, 1'); a('s_add_u32 s23, s23, s24'); a('s_lshl_b32 s23, s23, 10')
    a('s_add_u32 s21, s21, s23'); a(f's_add_u32 s21, s21, {AF}'); a('s_add_u32 s25, s21, 65536')
    wdstore('d')
    a('s_nop 7'); a('s_nop 7')
    a('s_lshl_b32 s24, s5, 2'); a('s_add_u32 s24, s24, s72'); a('s_cmp_eq_u32 s24, 2'); a('s_cbranch_scc0 K1_NO1024')
    a('s_lshl_b32 s24, s22, 7'); a(f's_add_u32 s24, s24, {A1024}')
    a('v_lshlrev_b32 v2, 2, v1'); a('v_cmp_gt_u32 vcc, 32, v1'); a('s_and_saveexec_b64 s[26:27], vcc')
    a('buffer_store_dword v64, v2, s[32:35], s24 offen'); a('buffer_store_dword v80, v2, s[32:35], s24 offen offset:128')
    a('s_mov_b64 exec, s[26:27]')
    a.lab('K1_NO1024')
    a('s_cmp_eq_u32 s20, 0'); a('s_cbranch_scc1 K1_EP_AE')
    for r in range(32): a(f'v_mov_b32 v{64+r}, v{96+r}')
    a.lab('K1_EP_AE')
    for t in range(2):
        g=64+16*t
        for q in range(8): a(f'v_cvt_pk_bf16_f32 v{32+8*t+q}, v{g+2*q}, v{g+2*q+1}')
        so='s21' if t==0 else 's25'
        a(f'buffer_store_dwordx4 v[{32+8*t}:{35+8*t}], v14, s[32:35], {so} offen{SC}')
        a(f'buffer_store_dwordx4 v[{36+8*t}:{39+8*t}], v14, s[32:35], {so} offen offset:1024{SC}')
    a.stamp_out(0) if False else None
    if STAMP is not None:
        a('s_waitcnt vmcnt(0)'); a('s_memrealtime s[100:101]'); a('s_load_dwordx2 s[6:7], s[0:1], 80'); a('s_waitcnt lgkmcnt(0)')
        a('v_cmp_eq_u32 vcc, 0, v0'); a('s_and_saveexec_b64 s[4:5], vcc'); a('s_cbranch_execz K1_END')
        a('s_lshl_b32 s8, s2, 4'); a('s_add_u32 s8, s8, 1024'); a('v_mov_b32 v2, s8')
        a('v_mov_b32 v4, s98'); a('v_mov_b32 v5, s99'); a('v_mov_b32 v6, s100'); a('v_mov_b32 v7, s101')
        a('global_store_dwordx4 v2, v[4:7], s[6:7]')
    a.lab('K1_END')
    a('s_endpgm')
    return K,a.txt()
```

```python
HF=0; WF=0x700000; CF=0x8C0000; AF=0xCC0000; A1024=0xDC0000; WSZ=0xDC0400
STAMP=None
class Asm:
    def __init__(s): s.l=[]; s.ns=0
    def stamp(s):
        if STAMP is None: return
        if s.ns==0: s('s_memrealtime s[98:99]')
        s(f's_memtime s[{74+2*s.ns}:{75+2*s.ns}]'); s.ns+=1
    def stamp_out(s,k):
        if STAMP is None: return
        s.uid=getattr(s,'uid',0)+1
        L=f'ST_{k}_{s.uid}'
        s('s_memrealtime s[100:101]'); s('s_load_dwordx2 s[6:7], s[0:1], 80'); s('s_waitcnt lgkmcnt(0)')
        s('v_cmp_eq_u32 vcc, 0, v0'); s('s_and_saveexec_b64 s[4:5], vcc'); s(f's_cbranch_execz {L}')
        s(f's_lshl_b32 s8, s2, 4'); s(f's_add_u32 s8, s8, {1024+4096*k}'); s('v_mov_b32 v2, s8')
        s('v_mov_b32 v4, s98'); s('v_mov_b32 v5, s99'); s('v_mov_b32 v6, s100'); s('v_mov_b32 v7, s101')
        s('global_store_dwordx4 v2, v[4:7], s[6:7]')
        s(f's_cmp_eq_u32 s2, {STAMP}'); s(f's_cbranch_scc0 {L}')
        s('v_cmp_eq_u32 vcc, 0, v0'); s('s_and_saveexec_b64 s[4:5], vcc'); s(f's_cbranch_execz {L}')
        s('s_load_dwordx2 s[6:7], s[0:1], 80'); s('s_waitcnt lgkmcnt(0)')
        s(f'v_mov_b32 v2, {128*k}')
        for i in range(s.ns):
            s(f'v_mov_b32 v4, s{74+2*i}'); s(f'v_mov_b32 v5, s{75+2*i}')
            s(f'global_store_dwordx2 v2, v[4:5], s[6:7] offset:{8*i}')
        s.lab(L)
    def __call__(s,x): s.l.append('    '+x)
    def lab(s,x): s.l.append(x+':')
    def txt(s): return '\n'.join(s.l)+'\n'

def srd(a,reg,ptr,size):
    a(f's_mov_b32 s{reg}, s{ptr}'); a(f's_and_b32 s{reg+1}, s{ptr+1}, 0xffff')
    a(f's_mov_b32 s{reg+2}, {hex(size)}'); a(f's_mov_b32 s{reg+3}, 0x20000')

def mirror_row(a,dst,tmp):
    a(f'v_sub_u32 v{dst}, 0x800, v{dst}')
    a(f'v_cmp_eq_u32 vcc, 0x800, v{dst}')
    a(f'v_mov_b32 v{tmp}, 0x400'); a('s_nop 0')
    a(f'v_cndmask_b32 v{dst}, v{dst}, v{tmp}, vcc')

def k1(SC=''):
    a=Asm()
    K='fnet_k1_kernel'
    a.l.append(f'.globl {K}\n.p2align 8\n.type {K},@function\n{K}:')
    a('s_cmp_ge_u32 s2, 256'); a('s_cbranch_scc1 K1_END')
    a.stamp()
    a('s_load_dwordx4 s[36:39], s[0:1], 0')
    a('s_load_dwordx4 s[40:43], s[0:1], 16')
    a('s_load_dwordx2 s[44:45], s[0:1], 32')
    a('s_load_dwordx4 s[48:51], s[0:1], 48')
    a('s_load_dwordx2 s[52:53], s[0:1], 64')
    a('s_load_dwordx2 s[54:55], s[0:1], 88')
    a('s_and_b32 s3, s2, 7'); a('s_lshr_b32 s4, s2, 3')
    a('s_and_b32 s5, s3, 1'); a('s_lshl_b32 s5, s5, 3'); a('s_and_b32 s6, s4, 7'); a('s_add_u32 s5, s5, s6')
    a('s_lshr_b32 s6, s3, 1'); a('s_lshl_b32 s6, s6, 2'); a('s_lshr_b32 s7, s4, 3'); a('s_add_u32 s6, s6, s7')
    a('v_and_b32 v1, 63, v0')
    a('v_lshrrev_b32 v2, 6, v0')
    a('s_nop 0')
    a('v_readfirstlane_b32 s7, v2')
    a('s_cmp_ge_u32 s6, 14'); a('s_cselect_b32 s56, 1, 0')
    a('v_lshrrev_b32 v3, 3, v1')
    a('v_and_b32 v4, 7, v1')
    a('s_cmp_eq_u32 s56, 1'); a('s_cbranch_scc1 K1_ROWS_DFT')
    a('s_lshr_b32 s8, s7, 1'); a('s_lshl_b32 s9, s5, 2'); a('s_add_u32 s8, s8, s9')
    a('s_and_b32 s9, s7, 1'); a('s_lshl_b32 s9, s9, 4')
    a('s_lshr_b32 s10, s8, 1'); a('s_lshl_b32 s10, s10, 5'); a('s_add_u32 s9, s9, s10')
    a('v_add_u32 v5, s9, v3'); a('v_add_u32 v6, 8, v5')
    a('s_and_b32 s8, s8, 1'); a('s_cmp_eq_u32 s8, 0'); a('s_cbranch_scc1 K1_ROWS_A')
    mirror_row(a,5,7); mirror_row(a,6,7)
    a.lab('K1_ROWS_A')
    a('s_lshl_b32 s9, s7, 4'); a('v_add_u32 v7, s9, v3'); a('v_add_u32 v8, 8, v7')
    a('s_branch K1_ROWS_DONE')
    a.lab('K1_ROWS_DFT')
    a('s_lshl_b32 s9, s5, 6'); a('s_lshl_b32 s10, s7, 3'); a('s_add_u32 s9, s9, s10')
    a('v_add_u32 v5, s9, v3'); a('v_mov_b32 v6, v5')
    mirror_row(a,6,7)
    a('v_add_u32 v7, s10, v3'); a('v_add_u32 v8, 64, v7')
    a.lab('K1_ROWS_DONE')
    a('v_lshlrev_b32 v9, 4, v4')
    a('v_lshl_add_u32 v5, v5, 10, v9'); a('v_lshl_add_u32 v6, v6, 10, v9')
    for R in (7,8):
        a(f'v_and_b32 v10, 15, v{R}'); a('v_xor_b32 v10, v10, v4'); a('v_lshlrev_b32 v10, 4, v10')
        a(f'v_lshl_add_u32 v{R}, v{R}, 9, v10')
    a('s_waitcnt lgkmcnt(0)')
    srd(a,8,36,2048*1024)
    srd(a,32,54,WSZ)
    for jj in range(8): a(f'buffer_load_dwordx4 v[{64+4*jj}:{67+4*jj}], v5, s[8:11], 0 offen offset:{128*jj}')
    for jj in range(8): a(f'buffer_load_dwordx4 v[{96+4*jj}:{99+4*jj}], v6, s[8:11], 0 offen offset:{128*jj}')
    a('s_cmp_eq_u32 s56, 1')
    a('s_cselect_b32 s48, s42, s48'); a('s_cselect_b32 s49, s43, s49')
    a('s_cselect_b32 s50, s44, s50'); a('s_cselect_b32 s51, s45, s51')
    a('s_mov_b32 s57, 3584'); a('s_mov_b32 s59, 0x1C0000')
    a('s_cselect_b32 s57, 1024, s57')
    a('s_cselect_b32 s59, 0x80000, s59')
    srd(a,12,48,0); srd(a,16,50,0)
    a('s_mov_b32 s14, s59'); a('s_mov_b32 s18, s59')
    a('s_sub_u32 s58, s6, 14'); a('s_cmp_eq_u32 s56, 1'); a('s_cselect_b32 s58, s58, s6'); a('s_lshl_b32 s58, s58, 8')
    a('v_lshrrev_b32 v10, 4, v1'); a('s_lshl_b32 s20, s7, 3'); a('v_add_u32 v11, s20, v10')
    a('v_mul_lo_u32 v11, v11, s57')
    a('v_lshlrev_b32 v10, 2, v10'); a('v_and_b32 v12, 15, v1'); a('v_xor_b32 v10, v10, v12')
    a('v_lshl_add_u32 v11, v10, 4, v11'); a('v_add_u32 v11, s58, v11')
    a('s_lshl_b32 s60, s57, 2')
    a('s_lshl_b32 s61, s57, 6')
    a('s_lshl_b32 s62, s7, 11')
    def dma1(stage,rb,idx):
        part,q=idx>>1,idx&1; sr=(12,16)[part]
        a(f's_mul_i32 s63, s61, {stage}')
        if q: a('s_add_u32 s63, s63, s60')
        a(f's_add_u32 m0, s62, {rb+part*16384+q*1024}'); a('s_nop 0')
        a(f'buffer_load_dwordx4 v11, s[{sr}:{sr+3}], s63 offen lds')
    def dma(stage,rb):
        a(f's_mul_i32 s63, s61, {stage}'); a('s_add_u32 s64, s63, s60')
        for part,sr in ((0,12),(1,16)):
            for q in range(2):
                a(f's_add_u32 m0, s62, {rb+part*16384+q*1024}')
                a('s_nop 0')
                a(f'buffer_load_dwordx4 v11, s[{sr}:{sr+3}], s{63+q} offen lds')
    a('v_and_b32 v12, 31, v1'); a('v_lshrrev_b32 v13, 5, v1')
    M4='v_mfma_f32_4x4x4_16b_bf16'
    a('v_mov_b32 v48, 0x3f803f80'); a('v_mov_b32 v49, v48')
    a('v_and_b32 v2, 1, v1'); a('v_cmp_eq_u32 s[20:21], 1, v2'); a('v_and_b32 v2, 2, v1'); a('v_cmp_eq_u32 s[22:23], 2, v2')
    a('v_xor_b32 v5, 128, v7'); a('v_xor_b32 v6, 128, v8')
    a('v_mov_b32 v16, 0'); a('v_mov_b32 v18, 0'); a('s_mov_b32 s67, 0x3f803f80')
    for r in (17,19,20,21,22,23): a(f'v_mov_b32 v{r}, 0')
    for row,(base,S,Q,S2,Q2) in enumerate(((64,16,17,20,21),(96,18,19,22,23))):
        a(f's_waitcnt vmcnt({8 if row==0 else 0})')
        if row==1:
            a.stamp(); dma(0,65536); dma(1,98304)
        for p in range(16):
            x0=base+2*p; x1=x0+1
            a(f'v_dot2_f32_bf16 v{Q}, v{x0}, v{x0}, v{Q}'); a(f'v_dot2_f32_bf16 v{S}, v{x0}, s67, v{S}')
            a(f'v_dot2_f32_bf16 v{Q2}, v{x1}, v{x1}, v{Q2}'); a(f'v_dot2_f32_bf16 v{S2}, v{x1}, s67, v{S2}')
    a.stamp(); a('s_nop 2')
    for r in (16,17,18,19): a(f'v_add_f32 v{r}, v{r}, v{r+4 if r<18 else r+4}')
    a('s_nop 1')
    for ctl in ('quad_perm:[1,0,3,2]','quad_perm:[2,3,0,1]','row_half_mirror'):
        for r in (16,17,18,19):
            a(f'v_add_f32_dpp v{r}, v{r}, v{r} {ctl} row_mask:0xf bank_mask:0xf')
        a('s_nop 1')
    a('s_mov_b32 s68, 0x3b000000')
    a('s_mov_b32 s69, 0x3727c5ac')
    for (sm,sq,rr,mm) in ((16,17,56,57),(18,19,58,59)):
        a(f'v_mul_f32 v{sm}, s68, v{sm}')
        a(f'v_mul_f32 v{sq}, s68, v{sq}')
        a(f'v_fma_f32 v{sq}, -v{sm}, v{sm}, v{sq}')
        a(f'v_max_f32 v{sq}, 0, v{sq}')
        a(f'v_add_f32 v{sq}, s69, v{sq}')
        a(f'v_rsq_f32 v{rr}, v{sq}')
        a('s_nop 0')
        a(f'v_sub_f32 v{mm}, 0, v{sm}')
    a('v_and_b32 v2, 1, v1'); a('v_lshlrev_b32 v60, 4, v2'); a('v_mov_b32 v61, 0'); a('v_mov_b32 v2, 0x3f80')
    a('v_lshlrev_b32 v2, v60, v2'); a('v_cndmask_b32 v16, v2, v61, s[22:23]'); a('v_cndmask_b32 v17, v61, v2, s[22:23]')
    for q in range(4): a(f'v_mov_b32 v{48+q}, v57'); a(f'v_mov_b32 v{52+q}, v59')
    def wr(jj):
        for (base,ae,ao) in ((64,7,5),(96,8,6)):
            ad=ao if jj&1 else ae
            o=((jj&3)>>1)*32
            a(f'ds_write2_b64 v{ad}, v[{base+4*jj}:{base+1+4*jj}], v[{base+2+4*jj}:{base+3+4*jj}] offset0:{o} offset1:{o+1}')
    def cvt(jj,dft):
        D=128+16*(jj&1)
        if dft:
            for h in range(4):
                u=f'v[{D+2*h}:{D+2*h+1}]'; v=f'v[{D+8+2*h}:{D+8+2*h+1}]'
                a(f'v_pk_mul_f32 v[32:33], {u}, v[20:21] op_sel_hi:[1,0]'); a(f'v_pk_mul_f32 v[34:35], {u}, v[24:25] op_sel_hi:[1,0]')
                a(f'v_pk_fma_f32 v[32:33], {v}, v[22:23], v[32:33] op_sel_hi:[1,0,1]'); a(f'v_pk_fma_f32 v[34:35], {v}, v[26:27], v[34:35] op_sel_hi:[1,0,1]')
                a(f'v_cvt_pk_bf16_f32 v{64+4*jj+h}, v32, v33'); a(f'v_cvt_pk_bf16_f32 v{96+4*jj+h}, v34, v35')
        else:
            for g in range(4):
                base=(64 if g<2 else 96)+4*jj+2*(g&1)
                a(f'v_cvt_pk_bf16_f32 v{base}, v{D+4*g}, v{D+4*g+1}'); a(f'v_cvt_pk_bf16_f32 v{base+1}, v{D+4*g+2}, v{D+4*g+3}')
        if jj<4: wr(jj)
    def norm(dft):
        for jj in range(9):
            if jj<8:
                D=128+16*(jj&1)
                for g in range(4):
                    xb=(64 if g<2 else 96)+4*jj+2*(g&1)
                    a(f'{M4} v[{D+4*g}:{D+4*g+3}], v[16:17], v[{xb}:{xb+1}], v[{48+4*(g>>1)}:{51+4*(g>>1)}]')
                if jj==0: a('s_nop 4')
            else: a('s_nop 4')
            if jj>0: cvt(jj-1,dft)
    a('s_nop 1'); a.stamp()
    a('s_cmp_eq_u32 s56, 1'); a('s_cbranch_scc1 K1_NORM_DFT')
    a('s_lshl_b32 s71, s7, 6'); a('s_add_u32 s71, s71, 131072'); a('v_lshl_add_u32 v2, v3, 2, s71')
    a('ds_write_b32 v2, v56'); a('ds_write_b32 v2, v58 offset:32')
    norm(False)
    a('s_branch K1_NORM_DONE')
    a.lab('K1_NORM_DFT')
    a('s_lshl_b32 s71, s5, 3'); a('s_add_u32 s71, s71, s7')
    a('v_or_b32 v30, s71, v3'); a('v_cmp_eq_u32 vcc, 0, v30')
    a('v_mov_b32 v62, 1.0'); a('v_mov_b32 v63, -1.0')
    a('v_cndmask_b32 v30, v62, v61, vcc'); a('v_cndmask_b32 v31, v63, v62, vcc')
    a('v_mov_b32 v20, v56'); a('v_mul_f32 v22, v30, v58'); a('v_mul_f32 v24, v30, v56'); a('v_mul_f32 v26, v31, v58')
    norm(True)
    a.lab('K1_NORM_DONE')
    a.stamp()
    a('v_lshlrev_b32 v14, 4, v1')
    a('s_and_b32 s72, s7, 3'); a('s_lshr_b32 s73, s7, 2')
    a('s_lshl_b32 s20, s72, 5'); a('v_add_u32 v15, s20, v12')
    a('v_and_b32 v16, 15, v15'); a('v_xor_b32 v16, v16, v13'); a('v_lshlrev_b32 v16, 4, v16')
    a('v_lshl_add_u32 v15, v15, 9, v16')
    for m in range(8): a(f'v_xor_b32 v{16+m}, {32*m}, v15')
    a('s_waitcnt lgkmcnt(0)'); a.stamp(); a('s_barrier'); a.stamp()
    for ks in range(16):
        a(f'ds_read_b128 v[{128+4*ks}:{131+4*ks}], v{16+(ks&7)} offset:{(ks>>3)*256}')
    a('s_lshl_b32 s20, s72, 7'); a('s_add_u32 s20, s20, 131072'); a('v_lshl_add_u32 v2, v12, 2, s20'); a('ds_read_b32 v15, v2')
    a('v_lshrrev_b32 v24, 4, v1'); a('v_and_b32 v25, 15, v1'); a('v_lshrrev_b32 v26, 2, v25')
    a('v_lshrrev_b32 v27, 1, v24'); a('v_lshl_add_u32 v27, v27, 3, v26'); a('v_lshlrev_b32 v27, 8, v27')
    a('s_lshl_b32 s20, s73, 1'); a('v_xor_b32 v26, s20, v26'); a('v_lshl_add_u32 v27, v26, 6, v27')
    a('v_and_b32 v24, 1, v24'); a('v_lshl_add_u32 v27, v24, 5, v27')
    a('v_and_b32 v25, 3, v25'); a('v_lshl_add_u32 v27, v25, 3, v27')
    a('v_xor_b32 v28, 64, v27')
    a('s_or_b32 s20, s58, s73'); a('v_or_b32 v29, s20, v12'); a('v_cmp_eq_u32 vcc, 0, v29')
    a('v_mov_b32 v30, 0'); a('v_bfrev_b32 v31, 1'); a('v_cndmask_b32 v29, v30, v31, vcc')
    RB=[65536,98304,131072,65536,0,32768,98304,131072]
    srd(a,20+4,52,1792*1024)
    a('s_min_u32 s28, s2, 223'); a('s_mul_i32 s29, s28, 4682'); a('s_lshr_b32 s29, s29, 16')
    a('s_mul_i32 s30, s29, 14'); a('s_sub_u32 s30, s28, s30'); a('s_lshl_b32 s30, s30, 3'); a('s_add_u32 s30, s30, s7')
    a('s_lshr_b32 s31, s29, 1'); a('s_lshl_b32 s31, s31, 5')
    a('v_add_u32 v24, s31, v12')
    a('s_and_b32 s31, s29, 1'); a('s_cmp_eq_u32 s31, 0'); a('s_cbranch_scc1 K1_WD_A')
    a('v_sub_u32 v24, 0x200, v24'); a('v_cmp_eq_u32 vcc, 0x200, v24'); a('v_mov_b32 v25, 0x100'); a('s_nop 0'); a('v_cndmask_b32 v24, v24, v25, vcc')
    a.lab('K1_WD_A')
    a('v_lshlrev_b32 v24, 1, v24'); a('v_lshl_add_u32 v24, v13, 12, v24')
    a('s_lshl_b32 s30, s30, 14'); a('s_add_u32 s31, s30, 8192')
    def gather(z):
        g,i=z>>2,z&3
        a(f'buffer_load_ushort v{16+4*g+i}, v24, s[24:27], s{30+g} offen offset:{1024*i}')
    a('s_lshl_b32 s66, s28, 3'); a('s_add_u32 s66, s66, s7'); a('s_lshl_b32 s66, s66, 10'); a(f's_add_u32 s66, s66, {WF}')
    a('s_waitcnt vmcnt(4)'); a('s_waitcnt lgkmcnt(0)'); a.stamp(); a('s_barrier')
    a.stamp()
    dma(2,131072)
    DS={3:(3,0),4:(3,2),7:(4,0),8:(4,2),9:(5,0),10:(5,2),11:(6,0),12:(6,2),13:(7,0),14:(7,2)}
    VW={3:4,7:4,11:8,15:12,19:8,23:7,27:7}
    def main(dft,tag):
        def reads(i):
            st,kk=i>>2,i&3; buf=32+16*(i&1)
            if kk==0:
                a(f'v_add_u32 v2, {RB[st]}, v27'); a(f'v_add_u32 v3, {RB[st]}, v28')
            for part in range(2):
                for t in range(2):
                    for half in range(2):
                        r=buf+8*part+4*t+2*half
                        a(f'ds_read_b64_tr_b16 v[{r}:{r+1}], v{2+t} offset:{part*16384+kk*4096+half*1024}')
        reads(0)
        for jj in range(4,8): wr(jj)
        for i in range(32):
            st,kk=i>>2,i&3; buf=32+16*(i&1)
            a(f's_waitcnt lgkmcnt({8 if i==0 else 4 if i in (4,5,6) else 0})')
            if kk==3 and st<7:
                a(f's_waitcnt vmcnt({VW[i]})'); a('s_barrier')
            if i in (4,31) and not dft: a.stamp()
            if i<31: reads(i+1)
            if 3<=i<=6:
                for ks in range(16+4*(i-3),20+4*(i-3)):
                    a(f'ds_read_b128 v[{128+4*ks}:{131+4*ks}], v{16+(ks&7)} offset:{((ks&15)>>3)*256}')
            if i in DS:
                dma1(DS[i][0],RB[DS[i][0]],DS[i][1]); dma1(DS[i][0],RB[DS[i][0]],DS[i][1]+1)
            elif 20<=i<28: gather(i-20)
            if dft:
                for q in range(4): a(f'v_xor_b32 v{buf+q}, v29, v{buf+q}')
            order=(1,2,3,0) if dft else (0,1,2,3)
            for f in order:
                acc=64+16*f; w=f'v[{buf+4*f}:{buf+4*f+3}]'; x=f'v[{128+4*i}:{131+4*i}]'
                c='0' if i==0 else f'v[{acc}:{acc+15}]'
                if dft: a(f'v_mfma_f32_32x32x16_bf16 v[{acc}:{acc+15}], {x}, {w}, {c}')
                else:   a(f'v_mfma_f32_32x32x16_bf16 v[{acc}:{acc+15}], {w}, {x}, {c}')
    def wdstore(tag):
        a('s_waitcnt vmcnt(0)')
        for q in range(4): a(f'v_lshl_or_b32 v{4+q}, v{17+2*q}, 16, v{16+2*q}')
        a('s_cmp_ge_u32 s2, 224'); a(f's_cbranch_scc1 K1_NOWD_{tag}')
        a(f'buffer_store_dwordx4 v[4:7], v14, s[32:35], s66 offen{SC}')
        a.lab(f'K1_NOWD_{tag}')
    a('s_cmp_eq_u32 s56, 1'); a('s_cbranch_scc1 K1_MAIN_DFT')
    main(False,'g')
    a('s_lshl_b32 s20, s5, 2'); a('s_add_u32 s20, s20, s72'); a('s_mul_i32 s20, s20, 114688')
    a('s_lshl_b32 s21, s6, 3'); a('s_lshl_b32 s22, s73, 2'); a('s_add_u32 s21, s21, s22'); a('s_lshl_b32 s21, s21, 10')
    a('s_add_u32 s20, s20, s21')
    wdstore('g')
    a('v_mul_f32 v15, v15, v15'); a('s_nop 7')
    for t in range(2):
        g=64+16*t; u=96+16*t
        for r in range(16):
            a(f'v_max_f32 v{g+r}, 0, v{g+r}'); a(f'v_mul_f32 v{u+r}, v15, v{u+r}'); a(f'v_mul_f32 v{g+r}, v{g+r}, v{u+r}')
        for q in range(8): a(f'v_cvt_pk_bf16_f32 v{32+8*t+q}, v{g+2*q}, v{g+2*q+1}')
        a(f'buffer_store_dwordx4 v[{32+8*t}:{35+8*t}], v14, s[32:35], s20 offen offset:{2048*t}{SC}')
        a(f'buffer_store_dwordx4 v[{36+8*t}:{39+8*t}], v14, s[32:35], s20 offen offset:{2048*t+1024}{SC}')
    a.stamp(); a('s_waitcnt vmcnt(0)'); a.stamp(); a.stamp_out(0)
    a('s_endpgm')
    a.lab('K1_MAIN_DFT')
    main(True,'d')
    a('s_lshr_b32 s20, s72, 1'); a('s_lshl_b32 s21, s20, 19')
    a('s_lshr_b32 s22, s58, 8'); a('s_lshl_b32 s22, s22, 2'); a('s_lshl_b32 s23, s73, 1'); a('s_add_u32 s22, s22, s23')
    a('s_lshl_b32 s23, s22, 16'); a('s_add_u32 s21, s21, s23')
    a('s_lshl_b32 s23, s5, 2'); a('s_and_b32 s24, s72, 1'); a('s_lshl_b32 s24, s24, 1'); a('s_add_u32 s23, s23, s24'); a('s_lshl_b32 s23, s23, 10')
    a('s_add_u32 s21, s21, s23'); a(f's_add_u32 s21, s21, {AF}'); a('s_add_u32 s25, s21, 65536')
    wdstore('d')
    a('s_nop 7'); a('s_nop 7')
    a('s_lshl_b32 s24, s5, 2'); a('s_add_u32 s24, s24, s72'); a('s_cmp_eq_u32 s24, 2'); a('s_cbranch_scc0 K1_NO1024')
    a('s_lshl_b32 s24, s22, 7'); a(f's_add_u32 s24, s24, {A1024}')
    a('v_lshlrev_b32 v2, 2, v1'); a('v_cmp_gt_u32 vcc, 32, v1'); a('s_and_saveexec_b64 s[26:27], vcc')
    a('buffer_store_dword v64, v2, s[32:35], s24 offen'); a('buffer_store_dword v80, v2, s[32:35], s24 offen offset:128')
    a('s_mov_b64 exec, s[26:27]')
    a.lab('K1_NO1024')
    a('s_cmp_eq_u32 s20, 0'); a('s_cbranch_scc1 K1_EP_AE')
    for r in range(32): a(f'v_mov_b32 v{64+r}, v{96+r}')
    a.lab('K1_EP_AE')
    for t in range(2):
        g=64+16*t
        for q in range(8): a(f'v_cvt_pk_bf16_f32 v{32+8*t+q}, v{g+2*q}, v{g+2*q+1}')
        so='s21' if t==0 else 's25'
        a(f'buffer_store_dwordx4 v[{32+8*t}:{35+8*t}], v14, s[32:35], {so} offen{SC}')
        a(f'buffer_store_dwordx4 v[{36+8*t}:{39+8*t}], v14, s[32:35], {so} offen offset:1024{SC}')
    a.stamp_out(0) if False else None
    if STAMP is not None:
        a('s_waitcnt vmcnt(0)'); a('s_memrealtime s[100:101]'); a('s_load_dwordx2 s[6:7], s[0:1], 80'); a('s_waitcnt lgkmcnt(0)')
        a('v_cmp_eq_u32 vcc, 0, v0'); a('s_and_saveexec_b64 s[4:5], vcc'); a('s_cbranch_execz K1_END')
        a('s_lshl_b32 s8, s2, 4'); a('s_add_u32 s8, s8, 1024'); a('v_mov_b32 v2, s8')
        a('v_mov_b32 v4, s98'); a('v_mov_b32 v5, s99'); a('v_mov_b32 v6, s100'); a('v_mov_b32 v7, s101')
        a('global_store_dwordx4 v2, v[4:7], s[6:7]')
    a.lab('K1_END')
    a('s_endpgm')
    return K,a.txt()
```

```python
from gen1 import *
import gen1
def STAMPON(): return gen1.STAMP is not None
def k2(NW=12,ROT=False,MAP=0,TF=0):
    a=Asm()
    K='fnet_k2_kernel'
    a.l.append(f'.globl {K}\n.p2align 8\n.type {K},@function\n{K}:')
    a('s_cmp_ge_u32 s2, 256'); a('s_cbranch_scc1 K2_END')
    a.stamp()
    a('s_load_dwordx2 s[36:37], s[0:1], 0')
    a('s_load_dwordx2 s[38:39], s[0:1], 72')
    a('s_load_dwordx2 s[40:41], s[0:1], 88')
    a('s_and_b32 s3, s2, 7'); a('s_lshr_b32 s4, s2, 3')
    a('s_lshr_b32 s5, s3, 1'); a('s_lshl_b32 s5, s5, 3'); a('s_and_b32 s6, s4, 7'); a('s_add_u32 s5, s5, s6')
    a('s_and_b32 s6, s3, 1'); a('s_lshl_b32 s6, s6, 2'); a('s_lshr_b32 s7, s4, 3'); a('s_add_u32 s6, s6, s7')
    if MAP==1:
        a('s_lshl_b32 s5, s3, 2'); a('s_and_b32 s6, s4, 3'); a('s_add_u32 s5, s5, s6'); a('s_lshr_b32 s6, s4, 2')
    a('v_and_b32 v1, 63, v0'); a('v_lshrrev_b32 v2, 6, v0'); a('s_nop 0'); a('v_readfirstlane_b32 s7, v2')
    a('v_lshlrev_b32 v3, 4, v1')
    a('v_and_b32 v4, 31, v1'); a('v_lshrrev_b32 v5, 5, v1')
    a('s_mul_i32 s44, s5, 229376'); a('s_mul_i32 s20, s7, 28672'); a('s_add_u32 s44, s44, s20'); a('s_add_u32 s45, s44, 114688')
    a('s_mul_i32 s46, s6, 229376'); a('s_add_u32 s46, s46, s20'); a(f's_add_u32 s46, s46, {WF}'); a('s_add_u32 s47, s46, 114688')
    a('s_lshl_b32 s21, s7, 14')
    a('s_lshl_b32 s49, s6, 16'); a('s_add_u32 s49, s49, s21'); a(f's_add_u32 s49, s49, {AF}'); a(f's_add_u32 s51, s49, {8*65536}')
    a('s_and_b32 s52, s4, 7'); a('s_lshr_b32 s53, s4, 3'); a('s_lshl_b32 s53, s53, 1'); a('s_add_u32 s52, s52, s53')
    a('s_cmp_ge_u32 s52, 7'); a('s_cselect_b32 s53, 7, 0'); a('s_sub_u32 s52, s52, s53')
    a('s_cmp_ge_u32 s52, 7'); a('s_cselect_b32 s53, 7, 0'); a('s_sub_u32 s52, s52, s53')
    if not ROT: a("s_mov_b32 s52, 0")
    a("s_lshl_b32 s53, s52, 12")
    for r in (44,45,46,47): a(f's_add_u32 s{r}, s{r}, s53')
    a('s_mov_b32 s54, 4096')
    a('s_waitcnt lgkmcnt(0)')
    srd(a,8,40,WSZ); srd(a,12,36,2048*1024); srd(a,16,38,2048*1024)
    steps=[]; d=0; f=0
    for i in range(44):
        if f<16 and ((f<16-TF and d*(16-TF)>=f*28+10) or d==28): steps.append(('f',f)); f+=1
        else: steps.append(('d',d)); d+=1
    left={}
    def loads(i):
        kind,k=steps[i]; base=64+16*(i%NW)
        regs=(44,45,46,47) if kind=='d' else (49,51)
        for q,sr in enumerate(regs):
            a(f'buffer_load_dwordx4 v[{base+4*q}:{base+4*q+3}], v3, s[8:11], s{sr} offen offset:{(k&3)*1024}')
        if (k&3)==3:
            if kind=='d':
                a(f's_cmp_eq_u32 s52, {6-(k>>2)}'); a('s_cselect_b32 s55, -24576, s54')
                for sr in regs: a(f's_add_u32 s{sr}, s{sr}, s55')
            else:
                for sr in regs: a(f's_add_u32 s{sr}, s{sr}, 4096')
    for i in range(NW): loads(i)
    a('s_lshr_b32 s22, s7, 1'); a('s_and_b32 s23, s7, 1')
    a('s_lshl_b32 s24, s5, 5'); a('v_lshl_add_u32 v6, v5, 2, s24')
    a('s_lshl_b32 s24, s6, 5'); a('v_add_u32 v7, s24, v4')
    a('s_cmp_eq_u32 s23, 0'); a('s_cbranch_scc1 K2_COLA')
    a('v_sub_u32 v7, 0x200, v7'); a('v_cmp_eq_u32 vcc, 0x200, v7'); a('v_mov_b32 v8, 0x100'); a('s_nop 0'); a('v_cndmask_b32 v7, v7, v8, vcc')
    a.lab('K2_COLA')
    a('s_mov_b32 s25, 1024')
    a('s_cmp_eq_u32 s22, 0'); a('s_cbranch_scc1 K2_ROWA')
    a('v_sub_u32 v6, 0x800, v6'); a('s_mov_b32 s25, -1024')
    a.lab('K2_ROWA')
    a('v_lshlrev_b32 v6, 10, v6'); a('v_lshl_add_u32 v6, v7, 1, v6')
    for r in range(16):
        a(f'v_mov_b32 v8, {8*(r>>2)+(r&3)}'); a(f'v_mad_i32_i24 v{16+r}, v8, s25, v6')
    a('v_cmp_le_u32 vcc, 0x200000, v16'); a('v_subrev_u32 v8, 0x100000, v16'); a('s_nop 0'); a('v_cndmask_b32 v16, v16, v8, vcc')
    a('s_mov_b64 s[30:31], vcc')
    for r in range(16): a(f'buffer_load_ushort v{32+r}, v{16+r}, s[12:15], 0 offen')
    a('s_lshl_b32 s24, s6, 7'); a(f's_add_u32 s24, s24, {A1024}'); a('v_lshlrev_b32 v8, 2, v4')
    a('buffer_load_dword v9, v8, s[8:11], s24 offen')
    a('v_mov_b32 v12, 0xbf803f80'); a('v_mov_b32 v13, v12'); a('v_mov_b32 v14, v12'); a('v_mov_b32 v15, v12')
    extra=17
    a('s_lshl_b32 s24, s5, 5'); a('v_add_u32 v2, s24, v4'); a('v_cvt_f32_u32 v2, v2'); a('v_mul_f32 v2, 0x3a000000, v2')
    a('s_lshl_b32 s24, s7, 8'); a('v_lshl_add_u32 v6, v5, 2, s24')
    for q,dl in enumerate((0,1,2,3,8,9,10,11)):
        a(f'v_add_u32 v7, {dl}, v6'); a('v_cvt_f32_u32 v7, v7'); a(f'v_mul_f32 v{48+q}, v2, v7'); a(f'v_fract_f32 v{48+q}, v{48+q}')
    a('v_mul_f32 v11, 0x41800000, v2'); a('v_fract_f32 v11, v11')
    def gen():
        tc=(2,6,7,8);
        for h in range(2):
            for q in range(4): a(f'v_cos_f32 v{tc[q]}, v{48+4*h+q}')
            a(f'v_sin_f32_e64 v10, -v{48+4*h}')
            a(f'v_cvt_pk_bf16_f32 v{56+2*h}, v2, v6'); a(f'v_cvt_pk_bf16_f32 v{57+2*h}, v7, v8')
            a(f'v_sin_f32_e64 v6, -v{49+4*h}'); a(f'v_sin_f32_e64 v7, -v{50+4*h}'); a(f'v_sin_f32_e64 v8, -v{51+4*h}')
            a(f'v_add_f32 v{48+4*h}, v11, v{48+4*h}')
            a(f'v_cvt_pk_bf16_f32 v{60+2*h}, v10, v6'); a(f'v_cvt_pk_bf16_f32 v{61+2*h}, v7, v8')
            for q in range(1,4): a(f'v_add_f32 v{48+4*h+q}, v11, v{48+4*h+q}')
            for q in range(4): a(f'v_fract_f32 v{48+4*h+q}, v{48+4*h+q}')
    gen()
    def nl(i): return 4 if steps[i][0]=='d' else 2
    first={}
    def mf(acc,x,y):
        c=f'a[{acc}:{acc+15}]' if acc in first else '0'
        first[acc]=1
        a(f'v_mfma_f32_32x32x16_bf16 a[{acc}:{acc+15}], v[{x}:{x+3}], v[{y}:{y+3}], {c}')
    for i in range(44):
        kind,k=steps[i]; base=64+16*(i%NW)
        later=sum(nl(z) for z in range(i+1,min(i+NW,44)))
        if i<NW: later+=extra
        n=later
        if TF and i==44-TF+1:
            assert steps[i-1][0]=='f' and steps[i-2][0]=='d' and NW==12
            a('s_mul_i32 s26, s7, 24832'); a('v_add_u32 v64, s26, v3')
            for t in range(4):
                for q in range(4): a(f'ds_write_b128 v64, a[{16*t+4*q}:{16*t+4*q+3}] offset:{t*4096+q*1024}')
        a(f's_waitcnt vmcnt({min(n,63)})')
        if i in (0,11,22,33,43): a.stamp()
        if kind=='d':
            mf(0,base,base+8); mf(16,base,base+12); mf(32,base+4,base+8); mf(48,base+4,base+12)
        else:
            mf(64,56,base); mf(80,60,base+4); mf(96,12,base)
            if k<15:
                if i+NW<44: loads(i+NW)
                gen(); continue
        if i+NW<44: loads(i+NW)
    a('s_nop 7'); a('s_nop 7')
    for r in range(16):
        a(f'v_accvgpr_read_b32 v{64+r}, a{64+r}'); a(f'v_accvgpr_read_b32 v{96+r}, a{80+r}')
        a(f'v_add_f32 v{80+r}, v{64+r}, v{96+r}'); a(f'v_sub_f32 v{64+r}, v{64+r}, v{96+r}')
    a('s_mul_i32 s26, s7, 24832'); a('v_add_u32 v10, s26, v3')
    for t in range(0 if TF else 4):
        for q in range(4): a(f'ds_write_b128 v10, a[{16*t+4*q}:{16*t+4*q+3}] offset:{t*4096+q*1024}')
    for t in range(2):
        for q in range(4): a(f'ds_write_b128 v10, v[{64+16*t+4*q}:{64+16*t+4*q+3}] offset:{(4+t)*4096+q*1024}')
    a('v_lshlrev_b32 v11, 2, v1'); a('v_add_u32 v11, s26, v11'); a('v_accvgpr_read_b32 v8, a96')
    a('ds_write_b32 v11, v8 offset:24576')
    for r in range(16): a(f'v_lshlrev_b32 v{32+r}, 16, v{32+r}')
    a('s_mov_b32 s60, 0xbfb8aa3b'); a('s_mov_b32 s61, s60'); a('s_mov_b32 s62, 1.0'); a('s_mov_b32 s63, 1.0')
    a('v_mov_b32 v52, v9'); a('v_xor_b32 v53, 0x80000000, v9')
    a('s_waitcnt lgkmcnt(0)'); a('s_barrier'); a.stamp()
    a('s_lshl_b32 s27, s7, 12'); a('v_add_u32 v10, s27, v3')
    a('s_xor_b32 s27, s22, s23'); a('s_add_u32 s27, s27, 4'); a('s_lshl_b32 s27, s27, 12'); a('v_add_u32 v11, s27, v3')
    a('v_add_u32 v6, 49664, v10'); a('v_add_u32 v7, 49664, v11')
    for sw in range(4):
        rb=10 if sw<2 else 6; o=(sw&1)*24832
        for q in range(4): a(f'ds_read_b128 v[{64+16*sw+4*q}:{67+16*sw+4*q}], v{rb} offset:{o+q*1024}')
    for sw in range(4):
        ry=11 if sw<2 else 7; o=(sw&1)*24832
        for q in range(4): a(f'ds_read_b128 v[{128+16*sw+4*q}:{131+16*sw+4*q}], v{ry} offset:{o+q*1024}')
    a('v_lshlrev_b32 v8, 2, v4'); a('v_add_u32 v2, 49664, v8')
    a('ds_read_b32 v48, v8 offset:24576'); a(f'ds_read_b32 v49, v8 offset:{24576+24832}')
    a('ds_read_b32 v50, v2 offset:24576'); a(f'ds_read_b32 v51, v2 offset:{24576+24832}')
    def pk(op,d,x,y): a(f'v_pk_{op}_f32 v[{d}:{d+1}], v[{x}:{x+1}], {y}')
    a('s_waitcnt lgkmcnt(15)')
    for r in range(0,16,2):
        pk('add',64+r,64+r,f'v[{80+r}:{81+r}]'); pk('add',96+r,96+r,f'v[{112+r}:{113+r}]')
    for r in range(0,16,2): pk('add',64+r,64+r,f'v[{96+r}:{97+r}]')
    for r in range(0,16,2): pk('mul',96+r,64+r,'s[60:61]')
    for r in range(16): a(f'v_exp_f32 v{96+r}, v{96+r}')
    for r in range(0,16,2): pk('add',96+r,96+r,'s[62:63]')
    for r in range(16): a(f'v_rcp_f32 v{96+r}, v{96+r}')
    a('s_waitcnt lgkmcnt(0)')
    for r in range(0,16,2):
        pk('add',128+r,128+r,f'v[{144+r}:{145+r}]'); pk('add',160+r,160+r,f'v[{176+r}:{177+r}]')
    for r in range(0,16,2): pk('add',128+r,128+r,f'v[{160+r}:{161+r}]')
    for r in range(0,16,2): pk('add',128+r,128+r,'v[52:53]')
    a('v_add_f32 v48, v48, v49'); a('v_add_f32 v50, v50, v51'); a('v_add_f32 v48, v48, v50'); a('v_add_f32 v48, v48, v9')
    a('v_cndmask_b32 v128, v128, v48, s[30:31]')
    a('s_or_b32 s27, s6, s23'); a('v_or_b32 v8, s27, v4'); a('v_cmp_eq_u32 vcc, 0, v8'); a('v_mov_b32 v2, 0'); a('s_nop 0')
    a('s_cbranch_vccz K2_NOCOL')
    for r in range(16): a(f'v_cndmask_b32 v{128+r}, v{128+r}, v2, vcc')
    a.lab('K2_NOCOL')
    for r in range(0,16,2): pk('mul',64+r,64+r,f'v[{128+r}:{129+r}]')
    for r in range(0,16,2): a(f'v_pk_fma_f32 v[{64+r}:{65+r}], v[{64+r}:{65+r}], v[{96+r}:{97+r}], v[{32+r}:{33+r}]')
    for r in range(0,16,2): a(f'v_cvt_pk_bf16_f32 v{64+r}, v{64+r}, v{65+r}')
    for r in range(16): a(f'buffer_store_short{"_d16_hi" if r&1 else ""} v{64+(r&~1)}, v{16+r}, s[16:19], 0 offen')
    a.stamp()
    if STAMPON(): a('s_waitcnt vmcnt(0)')
    a.stamp(); a.stamp_out(1)
    a.lab('K2_END')
    a('s_endpgm')
    return K,a.txt()
```

```python
HF=0; WF=0x700000; CF=0x8C0000; AF=0xCC0000; A1024=0xDC0000; WSZ=0xDC0400
STAMP=None
class Asm:
    def __init__(s): s.l=[]; s.ns=0
    def stamp(s):
        if STAMP is None: return
        if s.ns==0: s('s_memrealtime s[98:99]')
        s(f's_memtime s[{74+2*s.ns}:{75+2*s.ns}]'); s.ns+=1
    def stamp_out(s,k):
        if STAMP is None: return
        s.uid=getattr(s,'uid',0)+1
        L=f'ST_{k}_{s.uid}'
        s('s_memrealtime s[100:101]'); s('s_load_dwordx2 s[6:7], s[0:1], 80'); s('s_waitcnt lgkmcnt(0)')
        s('v_cmp_eq_u32 vcc, 0, v0'); s('s_and_saveexec_b64 s[4:5], vcc'); s(f's_cbranch_execz {L}')
        s(f's_lshl_b32 s8, s2, 4'); s(f's_add_u32 s8, s8, {1024+4096*k}'); s('v_mov_b32 v2, s8')
        s('v_mov_b32 v4, s98'); s('v_mov_b32 v5, s99'); s('v_mov_b32 v6, s100'); s('v_mov_b32 v7, s101')
        s('global_store_dwordx4 v2, v[4:7], s[6:7]')
        s(f's_cmp_eq_u32 s2, {STAMP}'); s(f's_cbranch_scc0 {L}')
        s('v_cmp_eq_u32 vcc, 0, v0'); s('s_and_saveexec_b64 s[4:5], vcc'); s(f's_cbranch_execz {L}')
        s('s_load_dwordx2 s[6:7], s[0:1], 80'); s('s_waitcnt lgkmcnt(0)')
        s(f'v_mov_b32 v2, {128*k}')
        for i in range(s.ns):
            s(f'v_mov_b32 v4, s{74+2*i}'); s(f'v_mov_b32 v5, s{75+2*i}')
            s(f'global_store_dwordx2 v2, v[4:5], s[6:7] offset:{8*i}')
        s.lab(L)
    def __call__(s,x): s.l.append('    '+x)
    def lab(s,x): s.l.append(x+':')
    def txt(s): return '\n'.join(s.l)+'\n'

def srd(a,reg,ptr,size):
    a(f's_mov_b32 s{reg}, s{ptr}'); a(f's_and_b32 s{reg+1}, s{ptr+1}, 0xffff')
    a(f's_mov_b32 s{reg+2}, {hex(size)}'); a(f's_mov_b32 s{reg+3}, 0x20000')

def mirror_row(a,dst,tmp):
    a(f'v_sub_u32 v{dst}, 0x800, v{dst}')
    a(f'v_cmp_eq_u32 vcc, 0x800, v{dst}')
    a(f'v_mov_b32 v{tmp}, 0x400'); a('s_nop 0')
    a(f'v_cndmask_b32 v{dst}, v{dst}, v{tmp}, vcc')

def k1(SC=''):
    a=Asm()
    K='fnet_k1_kernel'
    a.l.append(f'.globl {K}\n.p2align 8\n.type {K},@function\n{K}:')
    a('s_cmp_ge_u32 s2, 256'); a('s_cbranch_scc1 K1_END')
    a.stamp()
    a('s_load_dwordx4 s[36:39], s[0:1], 0')
    a('s_load_dwordx4 s[40:43], s[0:1], 16')
    a('s_load_dwordx2 s[44:45], s[0:1], 32')
    a('s_load_dwordx4 s[48:51], s[0:1], 48')
    a('s_load_dwordx2 s[52:53], s[0:1], 64')
    a('s_load_dwordx2 s[54:55], s[0:1], 88')
    a('s_and_b32 s3, s2, 7'); a('s_lshr_b32 s4, s2, 3')
    a('s_and_b32 s5, s3, 1'); a('s_lshl_b32 s5, s5, 3'); a('s_and_b32 s6, s4, 7'); a('s_add_u32 s5, s5, s6')
    a('s_lshr_b32 s6, s3, 1'); a('s_lshl_b32 s6, s6, 2'); a('s_lshr_b32 s7, s4, 3'); a('s_add_u32 s6, s6, s7')
    a('v_and_b32 v1, 63, v0')
    a('v_lshrrev_b32 v2, 6, v0')
    a('s_nop 0')
    a('v_readfirstlane_b32 s7, v2')
    a('s_cmp_ge_u32 s6, 14'); a('s_cselect_b32 s56, 1, 0')
    a('v_lshrrev_b32 v3, 3, v1')
    a('v_and_b32 v4, 7, v1')
    a('s_cmp_eq_u32 s56, 1'); a('s_cbranch_scc1 K1_ROWS_DFT')
    a('s_lshr_b32 s8, s7, 1'); a('s_lshl_b32 s9, s5, 2'); a('s_add_u32 s8, s8, s9')
    a('s_and_b32 s9, s7, 1'); a('s_lshl_b32 s9, s9, 4')
    a('s_lshr_b32 s10, s8, 1'); a('s_lshl_b32 s10, s10, 5'); a('s_add_u32 s9, s9, s10')
    a('v_add_u32 v5, s9, v3'); a('v_add_u32 v6, 8, v5')
    a('s_and_b32 s8, s8, 1'); a('s_cmp_eq_u32 s8, 0'); a('s_cbranch_scc1 K1_ROWS_A')
    mirror_row(a,5,7); mirror_row(a,6,7)
    a.lab('K1_ROWS_A')
    a('s_lshl_b32 s9, s7, 4'); a('v_add_u32 v7, s9, v3'); a('v_add_u32 v8, 8, v7')
    a('s_branch K1_ROWS_DONE')
    a.lab('K1_ROWS_DFT')
    a('s_lshl_b32 s9, s5, 6'); a('s_lshl_b32 s10, s7, 3'); a('s_add_u32 s9, s9, s10')
    a('v_add_u32 v5, s9, v3'); a('v_mov_b32 v6, v5')
    mirror_row(a,6,7)
    a('v_add_u32 v7, s10, v3'); a('v_add_u32 v8, 64, v7')
    a.lab('K1_ROWS_DONE')
    a('v_lshlrev_b32 v9, 4, v4')
    a('v_lshl_add_u32 v5, v5, 10, v9'); a('v_lshl_add_u32 v6, v6, 10, v9')
    for R in (7,8):
        a(f'v_and_b32 v10, 15, v{R}'); a('v_xor_b32 v10, v10, v4'); a('v_lshlrev_b32 v10, 4, v10')
        a(f'v_lshl_add_u32 v{R}, v{R}, 9, v10')
    a('s_waitcnt lgkmcnt(0)')
    srd(a,8,36,2048*1024)
    srd(a,32,54,WSZ)
    for jj in range(8): a(f'buffer_load_dwordx4 v[{64+4*jj}:{67+4*jj}], v5, s[8:11], 0 offen offset:{128*jj}')
    for jj in range(8): a(f'buffer_load_dwordx4 v[{96+4*jj}:{99+4*jj}], v6, s[8:11], 0 offen offset:{128*jj}')
    a('s_cmp_eq_u32 s56, 1')
    a('s_cselect_b32 s48, s42, s48'); a('s_cselect_b32 s49, s43, s49')
    a('s_cselect_b32 s50, s44, s50'); a('s_cselect_b32 s51, s45, s51')
    a('s_mov_b32 s57, 3584'); a('s_mov_b32 s59, 0x1C0000')
    a('s_cselect_b32 s57, 1024, s57')
    a('s_cselect_b32 s59, 0x80000, s59')
    srd(a,12,48,0); srd(a,16,50,0)
    a('s_mov_b32 s14, s59'); a('s_mov_b32 s18, s59')
    a('s_sub_u32 s58, s6, 14'); a('s_cmp_eq_u32 s56, 1'); a('s_cselect_b32 s58, s58, s6'); a('s_lshl_b32 s58, s58, 8')
    a('v_lshrrev_b32 v10, 4, v1'); a('s_lshl_b32 s20, s7, 3'); a('v_add_u32 v11, s20, v10')
    a('v_mul_lo_u32 v11, v11, s57')
    a('v_lshlrev_b32 v10, 2, v10'); a('v_and_b32 v12, 15, v1'); a('v_xor_b32 v10, v10, v12')
    a('v_lshl_add_u32 v11, v10, 4, v11'); a('v_add_u32 v11, s58, v11')
    a('s_lshl_b32 s60, s57, 2')
    a('s_lshl_b32 s61, s57, 6')
    a('s_lshl_b32 s62, s7, 11')
    def dma1(stage,rb,idx):
        part,q=idx>>1,idx&1; sr=(12,16)[part]
        a(f's_mul_i32 s63, s61, {stage}')
        if q: a('s_add_u32 s63, s63, s60')
        a(f's_add_u32 m0, s62, {rb+part*16384+q*1024}'); a('s_nop 0')
        a(f'buffer_load_dwordx4 v11, s[{sr}:{sr+3}], s63 offen lds')
    def dma(stage,rb):
        a(f's_mul_i32 s63, s61, {stage}'); a('s_add_u32 s64, s63, s60')
        for part,sr in ((0,12),(1,16)):
            for q in range(2):
                a(f's_add_u32 m0, s62, {rb+part*16384+q*1024}')
                a('s_nop 0')
                a(f'buffer_load_dwordx4 v11, s[{sr}:{sr+3}], s{63+q} offen lds')
    a('v_and_b32 v12, 31, v1'); a('v_lshrrev_b32 v13, 5, v1')
    M4='v_mfma_f32_4x4x4_16b_bf16'
    a('v_mov_b32 v48, 0x3f803f80'); a('v_mov_b32 v49, v48')
    a('v_and_b32 v2, 1, v1'); a('v_cmp_eq_u32 s[20:21], 1, v2'); a('v_and_b32 v2, 2, v1'); a('v_cmp_eq_u32 s[22:23], 2, v2')
    a('v_xor_b32 v5, 128, v7'); a('v_xor_b32 v6, 128, v8')
    a('v_mov_b32 v16, 0'); a('v_mov_b32 v18, 0'); a('s_mov_b32 s67, 0x3f803f80')
    for r in (17,19,20,21,22,23): a(f'v_mov_b32 v{r}, 0')
    for row,(base,S,Q,S2,Q2) in enumerate(((64,16,17,20,21),(96,18,19,22,23))):
        a(f's_waitcnt vmcnt({8 if row==0 else 0})')
        if row==1:
            a.stamp(); dma(0,65536); dma(1,98304)
        for p in range(16):
            x0=base+2*p; x1=x0+1
            a(f'v_dot2_f32_bf16 v{Q}, v{x0}, v{x0}, v{Q}'); a(f'v_dot2_f32_bf16 v{S}, v{x0}, s67, v{S}')
            a(f'v_dot2_f32_bf16 v{Q2}, v{x1}, v{x1}, v{Q2}'); a(f'v_dot2_f32_bf16 v{S2}, v{x1}, s67, v{S2}')
    a.stamp(); a('s_nop 2')
    for r in (16,17,18,19): a(f'v_add_f32 v{r}, v{r}, v{r+4 if r<18 else r+4}')
    a('s_nop 1')
    for ctl in ('quad_perm:[1,0,3,2]','quad_perm:[2,3,0,1]','row_half_mirror'):
        for r in (16,17,18,19):
            a(f'v_add_f32_dpp v{r}, v{r}, v{r} {ctl} row_mask:0xf bank_mask:0xf')
        a('s_nop 1')
    a('s_mov_b32 s68, 0x3b000000')
    a('s_mov_b32 s69, 0x3727c5ac')
    for (sm,sq,rr,mm) in ((16,17,56,57),(18,19,58,59)):
        a(f'v_mul_f32 v{sm}, s68, v{sm}')
        a(f'v_mul_f32 v{sq}, s68, v{sq}')
        a(f'v_fma_f32 v{sq}, -v{sm}, v{sm}, v{sq}')
        a(f'v_max_f32 v{sq}, 0, v{sq}')
        a(f'v_add_f32 v{sq}, s69, v{sq}')
        a(f'v_rsq_f32 v{rr}, v{sq}')
        a('s_nop 0')
        a(f'v_sub_f32 v{mm}, 0, v{sm}')
    a('v_and_b32 v2, 1, v1'); a('v_lshlrev_b32 v60, 4, v2'); a('v_mov_b32 v61, 0'); a('v_mov_b32 v2, 0x3f80')
    a('v_lshlrev_b32 v2, v60, v2'); a('v_cndmask_b32 v16, v2, v61, s[22:23]'); a('v_cndmask_b32 v17, v61, v2, s[22:23]')
    for q in range(4): a(f'v_mov_b32 v{48+q}, v57'); a(f'v_mov_b32 v{52+q}, v59')
    def wr(jj):
        for (base,ae,ao) in ((64,7,5),(96,8,6)):
            ad=ao if jj&1 else ae
            o=((jj&3)>>1)*32
            a(f'ds_write2_b64 v{ad}, v[{base+4*jj}:{base+1+4*jj}], v[{base+2+4*jj}:{base+3+4*jj}] offset0:{o} offset1:{o+1}')
    def cvt(jj,dft):
        D=128+16*(jj&1)
        if dft:
            for h in range(4):
                u=f'v[{D+2*h}:{D+2*h+1}]'; v=f'v[{D+8+2*h}:{D+8+2*h+1}]'
                a(f'v_pk_mul_f32 v[32:33], {u}, v[20:21] op_sel_hi:[1,0]'); a(f'v_pk_mul_f32 v[34:35], {u}, v[24:25] op_sel_hi:[1,0]')
                a(f'v_pk_fma_f32 v[32:33], {v}, v[22:23], v[32:33] op_sel_hi:[1,0,1]'); a(f'v_pk_fma_f32 v[34:35], {v}, v[26:27], v[34:35] op_sel_hi:[1,0,1]')
                a(f'v_cvt_pk_bf16_f32 v{64+4*jj+h}, v32, v33'); a(f'v_cvt_pk_bf16_f32 v{96+4*jj+h}, v34, v35')
        else:
            for g in range(4):
                base=(64 if g<2 else 96)+4*jj+2*(g&1)
                a(f'v_cvt_pk_bf16_f32 v{base}, v{D+4*g}, v{D+4*g+1}'); a(f'v_cvt_pk_bf16_f32 v{base+1}, v{D+4*g+2}, v{D+4*g+3}')
        if jj<4: wr(jj)
    def norm(dft):
        for jj in range(9):
            if jj<8:
                D=128+16*(jj&1)
                for g in range(4):
                    xb=(64 if g<2 else 96)+4*jj+2*(g&1)
                    a(f'{M4} v[{D+4*g}:{D+4*g+3}], v[16:17], v[{xb}:{xb+1}], v[{48+4*(g>>1)}:{51+4*(g>>1)}]')
                if jj==0: a('s_nop 4')
            else: a('s_nop 4')
            if jj>0: cvt(jj-1,dft)
    a('s_nop 1'); a.stamp()
    a('s_cmp_eq_u32 s56, 1'); a('s_cbranch_scc1 K1_NORM_DFT')
    a('s_lshl_b32 s71, s7, 6'); a('s_add_u32 s71, s71, 131072'); a('v_lshl_add_u32 v2, v3, 2, s71')
    a('ds_write_b32 v2, v56'); a('ds_write_b32 v2, v58 offset:32')
    norm(False)
    a('s_branch K1_NORM_DONE')
    a.lab('K1_NORM_DFT')
    a('s_lshl_b32 s71, s5, 3'); a('s_add_u32 s71, s71, s7')
    a('v_or_b32 v30, s71, v3'); a('v_cmp_eq_u32 vcc, 0, v30')
    a('v_mov_b32 v62, 1.0'); a('v_mov_b32 v63, -1.0')
    a('v_cndmask_b32 v30, v62, v61, vcc'); a('v_cndmask_b32 v31, v63, v62, vcc')
    a('v_mov_b32 v20, v56'); a('v_mul_f32 v22, v30, v58'); a('v_mul_f32 v24, v30, v56'); a('v_mul_f32 v26, v31, v58')
    norm(True)
    a.lab('K1_NORM_DONE')
    a.stamp()
    a('v_lshlrev_b32 v14, 4, v1')
    a('s_and_b32 s72, s7, 3'); a('s_lshr_b32 s73, s7, 2')
    a('s_lshl_b32 s20, s72, 5'); a('v_add_u32 v15, s20, v12')
    a('v_and_b32 v16, 15, v15'); a('v_xor_b32 v16, v16, v13'); a('v_lshlrev_b32 v16, 4, v16')
    a('v_lshl_add_u32 v15, v15, 9, v16')
    for m in range(8): a(f'v_xor_b32 v{16+m}, {32*m}, v15')
    a('s_waitcnt lgkmcnt(0)'); a.stamp(); a('s_barrier'); a.stamp()
    for ks in range(16):
        a(f'ds_read_b128 v[{128+4*ks}:{131+4*ks}], v{16+(ks&7)} offset:{(ks>>3)*256}')
    a('s_lshl_b32 s20, s72, 7'); a('s_add_u32 s20, s20, 131072'); a('v_lshl_add_u32 v2, v12, 2, s20'); a('ds_read_b32 v15, v2')
    a('v_lshrrev_b32 v24, 4, v1'); a('v_and_b32 v25, 15, v1'); a('v_lshrrev_b32 v26, 2, v25')
    a('v_lshrrev_b32 v27, 1, v24'); a('v_lshl_add_u32 v27, v27, 3, v26'); a('v_lshlrev_b32 v27, 8, v27')
    a('s_lshl_b32 s20, s73, 1'); a('v_xor_b32 v26, s20, v26'); a('v_lshl_add_u32 v27, v26, 6, v27')
    a('v_and_b32 v24, 1, v24'); a('v_lshl_add_u32 v27, v24, 5, v27')
    a('v_and_b32 v25, 3, v25'); a('v_lshl_add_u32 v27, v25, 3, v27')
    a('v_xor_b32 v28, 64, v27')
    a('s_or_b32 s20, s58, s73'); a('v_or_b32 v29, s20, v12'); a('v_cmp_eq_u32 vcc, 0, v29')
    a('v_mov_b32 v30, 0'); a('v_bfrev_b32 v31, 1'); a('v_cndmask_b32 v29, v30, v31, vcc')
    RB=[65536,98304,131072,65536,0,32768,98304,131072]
    srd(a,20+4,52,1792*1024)
    a('s_min_u32 s28, s2, 223'); a('s_mul_i32 s29, s28, 4682'); a('s_lshr_b32 s29, s29, 16')
    a('s_mul_i32 s30, s29, 14'); a('s_sub_u32 s30, s28, s30'); a('s_lshl_b32 s30, s30, 3'); a('s_add_u32 s30, s30, s7')
    a('s_lshr_b32 s31, s29, 1'); a('s_lshl_b32 s31, s31, 5')
    a('v_add_u32 v24, s31, v12')
    a('s_and_b32 s31, s29, 1'); a('s_cmp_eq_u32 s31, 0'); a('s_cbranch_scc1 K1_WD_A')
    a('v_sub_u32 v24, 0x200, v24'); a('v_cmp_eq_u32 vcc, 0x200, v24'); a('v_mov_b32 v25, 0x100'); a('s_nop 0'); a('v_cndmask_b32 v24, v24, v25, vcc')
    a.lab('K1_WD_A')
    a('v_lshlrev_b32 v24, 1, v24'); a('v_lshl_add_u32 v24, v13, 12, v24')
    a('s_lshl_b32 s30, s30, 14'); a('s_add_u32 s31, s30, 8192')
    def gather(z):
        g,i=z>>2,z&3
        a(f'buffer_load_ushort v{16+4*g+i}, v24, s[24:27], s{30+g} offen offset:{1024*i}')
    a('s_lshl_b32 s66, s28, 3'); a('s_add_u32 s66, s66, s7'); a('s_lshl_b32 s66, s66, 10'); a(f's_add_u32 s66, s66, {WF}')
    a('s_waitcnt vmcnt(4)'); a('s_waitcnt lgkmcnt(0)'); a.stamp(); a('s_barrier')
    a.stamp()
    dma(2,131072)
    DS={3:(3,0),4:(3,2),7:(4,0),8:(4,2),9:(5,0),10:(5,2),11:(6,0),12:(6,2),13:(7,0),14:(7,2)}
    VW={3:4,7:4,11:8,15:12,19:8,23:7,27:7}
    def main(dft,tag):
        def reads(i):
            st,kk=i>>2,i&3; buf=32+16*(i&1)
            if kk==0:
                a(f'v_add_u32 v2, {RB[st]}, v27'); a(f'v_add_u32 v3, {RB[st]}, v28')
            for part in range(2):
                for t in range(2):
                    for half in range(2):
                        r=buf+8*part+4*t+2*half
                        a(f'ds_read_b64_tr_b16 v[{r}:{r+1}], v{2+t} offset:{part*16384+kk*4096+half*1024}')
        reads(0)
        for jj in range(4,8): wr(jj)
        for i in range(32):
            st,kk=i>>2,i&3; buf=32+16*(i&1)
            a(f's_waitcnt lgkmcnt({8 if i==0 else 4 if i in (4,5,6) else 0})')
            if kk==3 and st<7:
                a(f's_waitcnt vmcnt({VW[i]})'); a('s_barrier')
            if i in (4,31) and not dft: a.stamp()
            if i<31: reads(i+1)
            if 3<=i<=6:
                for ks in range(16+4*(i-3),20+4*(i-3)):
                    a(f'ds_read_b128 v[{128+4*ks}:{131+4*ks}], v{16+(ks&7)} offset:{((ks&15)>>3)*256}')
            if i in DS:
                dma1(DS[i][0],RB[DS[i][0]],DS[i][1]); dma1(DS[i][0],RB[DS[i][0]],DS[i][1]+1)
            elif 20<=i<28: gather(i-20)
            if dft:
                for q in range(4): a(f'v_xor_b32 v{buf+q}, v29, v{buf+q}')
            order=(1,2,3,0) if dft else (0,1,2,3)
            for f in order:
                acc=64+16*f; w=f'v[{buf+4*f}:{buf+4*f+3}]'; x=f'v[{128+4*i}:{131+4*i}]'
                c='0' if i==0 else f'v[{acc}:{acc+15}]'
                if dft: a(f'v_mfma_f32_32x32x16_bf16 v[{acc}:{acc+15}], {x}, {w}, {c}')
                else:   a(f'v_mfma_f32_32x32x16_bf16 v[{acc}:{acc+15}], {w}, {x}, {c}')
    def wdstore(tag):
        a('s_waitcnt vmcnt(0)')
        for q in range(4): a(f'v_lshl_or_b32 v{4+q}, v{17+2*q}, 16, v{16+2*q}')
        a('s_cmp_ge_u32 s2, 224'); a(f's_cbranch_scc1 K1_NOWD_{tag}')
        a(f'buffer_store_dwordx4 v[4:7], v14, s[32:35], s66 offen{SC}')
        a.lab(f'K1_NOWD_{tag}')
    a('s_cmp_eq_u32 s56, 1'); a('s_cbranch_scc1 K1_MAIN_DFT')
    main(False,'g')
    a('s_lshl_b32 s20, s5, 2'); a('s_add_u32 s20, s20, s72'); a('s_mul_i32 s20, s20, 114688')
    a('s_lshl_b32 s21, s6, 3'); a('s_lshl_b32 s22, s73, 2'); a('s_add_u32 s21, s21, s22'); a('s_lshl_b32 s21, s21, 10')
    a('s_add_u32 s20, s20, s21')
    wdstore('g')
    a('v_mul_f32 v30, v15, v15'); a('s_nop 7')
    for t in range(2):
        g=64+16*t; u=96+16*t
        for r in range(0,16,2):
            a(f'v_max_f32 v{g+r}, 0, v{g+r}'); a(f'v_max_f32 v{g+r+1}, 0, v{g+r+1}')
            a(f'v_pk_mul_f32 v[{u+r}:{u+r+1}], v[{u+r}:{u+r+1}], v[30:31] op_sel_hi:[1,0]')
            a(f'v_pk_mul_f32 v[{g+r}:{g+r+1}], v[{g+r}:{g+r+1}], v[{u+r}:{u+r+1}]')
        for q in range(8): a(f'v_cvt_pk_bf16_f32 v{32+8*t+q}, v{g+2*q}, v{g+2*q+1}')
        a(f'buffer_store_dwordx4 v[{32+8*t}:{35+8*t}], v14, s[32:35], s20 offen offset:{2048*t}{SC}')
        a(f'buffer_store_dwordx4 v[{36+8*t}:{39+8*t}], v14, s[32:35], s20 offen offset:{2048*t+1024}{SC}')
    a.stamp(); a('s_waitcnt vmcnt(0)'); a.stamp(); a.stamp_out(0)
    a('s_endpgm')
    a.lab('K1_MAIN_DFT')
    main(True,'d')
    a('s_lshr_b32 s20, s72, 1'); a('s_lshl_b32 s21, s20, 19')
    a('s_lshr_b32 s22, s58, 8'); a('s_lshl_b32 s22, s22, 2'); a('s_lshl_b32 s23, s73, 1'); a('s_add_u32 s22, s22, s23')
    a('s_lshl_b32 s23, s22, 16'); a('s_add_u32 s21, s21, s23')
    a('s_lshl_b32 s23, s5, 2'); a('s_and_b32 s24, s72, 1'); a('s_lshl_b32 s24, s24, 1'); a('s_add_u32 s23, s23, s24'); a('s_lshl_b32 s23, s23, 10')
    a('s_add_u32 s21, s21, s23'); a(f's_add_u32 s21, s21, {AF}'); a('s_add_u32 s25, s21, 65536')
    wdstore('d')
    a('s_nop 7'); a('s_nop 7')
    a('s_lshl_b32 s24, s5, 2'); a('s_add_u32 s24, s24, s72'); a('s_cmp_eq_u32 s24, 2'); a('s_cbranch_scc0 K1_NO1024')
    a('s_lshl_b32 s24, s22, 7'); a(f's_add_u32 s24, s24, {A1024}')
    a('v_lshlrev_b32 v2, 2, v1'); a('v_cmp_gt_u32 vcc, 32, v1'); a('s_and_saveexec_b64 s[26:27], vcc')
    a('buffer_store_dword v64, v2, s[32:35], s24 offen'); a('buffer_store_dword v80, v2, s[32:35], s24 offen offset:128')
    a('s_mov_b64 exec, s[26:27]')
    a.lab('K1_NO1024')
    a('s_cmp_eq_u32 s20, 0'); a('s_cbranch_scc1 K1_EP_AE')
    for r in range(32): a(f'v_mov_b32 v{64+r}, v{96+r}')
    a.lab('K1_EP_AE')
    for t in range(2):
        g=64+16*t
        for q in range(8): a(f'v_cvt_pk_bf16_f32 v{32+8*t+q}, v{g+2*q}, v{g+2*q+1}')
        so='s21' if t==0 else 's25'
        a(f'buffer_store_dwordx4 v[{32+8*t}:{35+8*t}], v14, s[32:35], {so} offen{SC}')
        a(f'buffer_store_dwordx4 v[{36+8*t}:{39+8*t}], v14, s[32:35], {so} offen offset:1024{SC}')
    a.stamp_out(0) if False else None
    if STAMP is not None:
        a('s_waitcnt vmcnt(0)'); a('s_memrealtime s[100:101]'); a('s_load_dwordx2 s[6:7], s[0:1], 80'); a('s_waitcnt lgkmcnt(0)')
        a('v_cmp_eq_u32 vcc, 0, v0'); a('s_and_saveexec_b64 s[4:5], vcc'); a('s_cbranch_execz K1_END')
        a('s_lshl_b32 s8, s2, 4'); a('s_add_u32 s8, s8, 1024'); a('v_mov_b32 v2, s8')
        a('v_mov_b32 v4, s98'); a('v_mov_b32 v5, s99'); a('v_mov_b32 v6, s100'); a('v_mov_b32 v7, s101')
        a('global_store_dwordx4 v2, v[4:7], s[6:7]')
    a.lab('K1_END')
    a('s_endpgm')
    return K,a.txt()
```

```python
from gen1 import *
import gen1
def STAMPON(): return gen1.STAMP is not None
def k2(NW=12,ROT=False,MAP=0,TF=0):
    a=Asm()
    K='fnet_k2_kernel'
    a.l.append(f'.globl {K}\n.p2align 8\n.type {K},@function\n{K}:')
    a('s_cmp_ge_u32 s2, 256'); a('s_cbranch_scc1 K2_END')
    a.stamp()
    a('s_load_dwordx2 s[36:37], s[0:1], 0')
    a('s_load_dwordx2 s[38:39], s[0:1], 72')
    a('s_load_dwordx2 s[40:41], s[0:1], 88')
    a('s_and_b32 s3, s2, 7'); a('s_lshr_b32 s4, s2, 3')
    a('s_lshr_b32 s5, s3, 1'); a('s_lshl_b32 s5, s5, 3'); a('s_and_b32 s6, s4, 7'); a('s_add_u32 s5, s5, s6')
    a('s_and_b32 s6, s3, 1'); a('s_lshl_b32 s6, s6, 2'); a('s_lshr_b32 s7, s4, 3'); a('s_add_u32 s6, s6, s7')
    if MAP==1:
        a('s_lshl_b32 s5, s3, 2'); a('s_and_b32 s6, s4, 3'); a('s_add_u32 s5, s5, s6'); a('s_lshr_b32 s6, s4, 2')
    a('v_and_b32 v1, 63, v0'); a('v_lshrrev_b32 v2, 6, v0'); a('s_nop 0'); a('v_readfirstlane_b32 s7, v2')
    a('v_lshlrev_b32 v3, 4, v1')
    a('v_and_b32 v4, 31, v1'); a('v_lshrrev_b32 v5, 5, v1')
    a('s_mul_i32 s44, s5, 229376'); a('s_mul_i32 s20, s7, 28672'); a('s_add_u32 s44, s44, s20'); a('s_add_u32 s45, s44, 114688')
    a('s_mul_i32 s46, s6, 229376'); a('s_add_u32 s46, s46, s20'); a(f's_add_u32 s46, s46, {WF}'); a('s_add_u32 s47, s46, 114688')
    a('s_lshl_b32 s21, s7, 14')
    a('s_lshl_b32 s49, s6, 16'); a('s_add_u32 s49, s49, s21'); a(f's_add_u32 s49, s49, {AF}'); a(f's_add_u32 s51, s49, {8*65536}')
    a('s_and_b32 s52, s4, 7'); a('s_lshr_b32 s53, s4, 3'); a('s_lshl_b32 s53, s53, 1'); a('s_add_u32 s52, s52, s53')
    a('s_cmp_ge_u32 s52, 7'); a('s_cselect_b32 s53, 7, 0'); a('s_sub_u32 s52, s52, s53')
    a('s_cmp_ge_u32 s52, 7'); a('s_cselect_b32 s53, 7, 0'); a('s_sub_u32 s52, s52, s53')
    if not ROT: a("s_mov_b32 s52, 0")
    a("s_lshl_b32 s53, s52, 12")
    for r in (44,45,46,47): a(f's_add_u32 s{r}, s{r}, s53')
    a('s_mov_b32 s54, 4096')
    a('s_waitcnt lgkmcnt(0)')
    srd(a,8,40,WSZ); srd(a,12,36,2048*1024); srd(a,16,38,2048*1024)
    steps=[]; d=0; f=0
    for i in range(44):
        if f<16 and ((f<16-TF and d*(16-TF)>=f*28+10) or d==28): steps.append(('f',f)); f+=1
        else: steps.append(('d',d)); d+=1
    left={}
    def loads(i):
        kind,k=steps[i]; base=64+16*(i%NW)
        regs=(44,45,46,47) if kind=='d' else (49,51)
        for q,sr in enumerate(regs):
            a(f'buffer_load_dwordx4 v[{base+4*q}:{base+4*q+3}], v3, s[8:11], s{sr} offen offset:{(k&3)*1024}')
        if (k&3)==3:
            if kind=='d':
                a(f's_cmp_eq_u32 s52, {6-(k>>2)}'); a('s_cselect_b32 s55, -24576, s54')
                for sr in regs: a(f's_add_u32 s{sr}, s{sr}, s55')
            else:
                for sr in regs: a(f's_add_u32 s{sr}, s{sr}, 4096')
    for i in range(NW): loads(i)
    a('s_lshr_b32 s22, s7, 1'); a('s_and_b32 s23, s7, 1')
    a('s_lshl_b32 s24, s5, 5'); a('v_lshl_add_u32 v6, v5, 2, s24')
    a('s_lshl_b32 s24, s6, 5'); a('v_add_u32 v7, s24, v4')
    a('s_cmp_eq_u32 s23, 0'); a('s_cbranch_scc1 K2_COLA')
    a('v_sub_u32 v7, 0x200, v7'); a('v_cmp_eq_u32 vcc, 0x200, v7'); a('v_mov_b32 v8, 0x100'); a('s_nop 0'); a('v_cndmask_b32 v7, v7, v8, vcc')
    a.lab('K2_COLA')
    a('s_mov_b32 s25, 1024')
    a('s_cmp_eq_u32 s22, 0'); a('s_cbranch_scc1 K2_ROWA')
    a('v_sub_u32 v6, 0x800, v6'); a('s_mov_b32 s25, -1024')
    a.lab('K2_ROWA')
    a('v_lshlrev_b32 v6, 10, v6'); a('v_lshl_add_u32 v6, v7, 1, v6')
    for r in range(16):
        a(f'v_mov_b32 v8, {8*(r>>2)+(r&3)}'); a(f'v_mad_i32_i24 v{16+r}, v8, s25, v6')
    a('v_cmp_le_u32 vcc, 0x200000, v16'); a('v_subrev_u32 v8, 0x100000, v16'); a('s_nop 0'); a('v_cndmask_b32 v16, v16, v8, vcc')
    a('s_mov_b64 s[30:31], vcc')
    for r in range(16): a(f'buffer_load_ushort v{32+r}, v{16+r}, s[12:15], 0 offen')
    a('s_lshl_b32 s24, s6, 7'); a(f's_add_u32 s24, s24, {A1024}'); a('v_lshlrev_b32 v8, 2, v4')
    a('buffer_load_dword v9, v8, s[8:11], s24 offen')
    a('v_mov_b32 v12, 0xbf803f80'); a('v_mov_b32 v13, v12'); a('v_mov_b32 v14, v12'); a('v_mov_b32 v15, v12')
    extra=17
    a('s_lshl_b32 s24, s5, 5'); a('v_add_u32 v2, s24, v4'); a('v_cvt_f32_u32 v2, v2'); a('v_mul_f32 v2, 0x3a000000, v2')
    a('s_lshl_b32 s24, s7, 8'); a('v_lshl_add_u32 v6, v5, 2, s24')
    for q,dl in enumerate((0,1,2,3,8,9,10,11)):
        a(f'v_add_u32 v7, {dl}, v6'); a('v_cvt_f32_u32 v7, v7'); a(f'v_mul_f32 v{48+q}, v2, v7'); a(f'v_fract_f32 v{48+q}, v{48+q}')
    a('v_mul_f32 v11, 0x41800000, v2'); a('v_fract_f32 v11, v11')
    def gen():
        tc=(2,6,7,8);
        for h in range(2):
            for q in range(4): a(f'v_cos_f32 v{tc[q]}, v{48+4*h+q}')
            a(f'v_sin_f32_e64 v10, -v{48+4*h}')
            a(f'v_cvt_pk_bf16_f32 v{56+2*h}, v2, v6'); a(f'v_cvt_pk_bf16_f32 v{57+2*h}, v7, v8')
            a(f'v_sin_f32_e64 v6, -v{49+4*h}'); a(f'v_sin_f32_e64 v7, -v{50+4*h}'); a(f'v_sin_f32_e64 v8, -v{51+4*h}')
            a(f'v_add_f32 v{48+4*h}, v11, v{48+4*h}')
            a(f'v_cvt_pk_bf16_f32 v{60+2*h}, v10, v6'); a(f'v_cvt_pk_bf16_f32 v{61+2*h}, v7, v8')
            for q in range(1,4): a(f'v_add_f32 v{48+4*h+q}, v11, v{48+4*h+q}')
            for q in range(4): a(f'v_fract_f32 v{48+4*h+q}, v{48+4*h+q}')
    gen()
    def nl(i): return 4 if steps[i][0]=='d' else 2
    first={}
    def mf(acc,x,y):
        c=f'a[{acc}:{acc+15}]' if acc in first else '0'
        first[acc]=1
        a(f'v_mfma_f32_32x32x16_bf16 a[{acc}:{acc+15}], v[{x}:{x+3}], v[{y}:{y+3}], {c}')
    for i in range(44):
        kind,k=steps[i]; base=64+16*(i%NW)
        later=sum(nl(z) for z in range(i+1,min(i+NW,44)))
        if i<NW: later+=extra
        n=later
        if TF and i==44-TF+1:
            assert steps[i-1][0]=='f' and steps[i-2][0]=='d' and NW==12
            a('s_mul_i32 s26, s7, 24832'); a('v_add_u32 v64, s26, v3')
            for t in range(4):
                for q in range(4): a(f'ds_write_b128 v64, a[{16*t+4*q}:{16*t+4*q+3}] offset:{t*4096+q*1024}')
        a(f's_waitcnt vmcnt({min(n,63)})')
        if i in (0,11,22,33,43): a.stamp()
        if kind=='d':
            mf(0,base,base+8); mf(16,base,base+12); mf(32,base+4,base+8); mf(48,base+4,base+12)
        else:
            mf(64,56,base); mf(80,60,base+4); mf(96,12,base)
            if k<15:
                if i+NW<44: loads(i+NW)
                gen(); continue
        if i+NW<44: loads(i+NW)
    a('s_nop 7'); a('s_nop 7')
    a('s_mul_i32 s26, s7, 24832'); a('v_add_u32 v10, s26, v3')
    wl=[f'ds_write_b128 v10, a[{16*t+4*q}:{16*t+4*q+3}] offset:{t*4096+q*1024}' for t in range(0 if TF else 4) for q in range(4)]
    vl=[]
    for r in range(0,16,2):
        vl+=[f'v_accvgpr_read_b32 v{64+r}, a{64+r}',f'v_accvgpr_read_b32 v{65+r}, a{65+r}',f'v_accvgpr_read_b32 v{96+r}, a{80+r}',f'v_accvgpr_read_b32 v{97+r}, a{81+r}',
             f'v_pk_add_f32 v[{80+r}:{81+r}], v[{64+r}:{65+r}], v[{96+r}:{97+r}]',
             f'v_pk_add_f32 v[{64+r}:{65+r}], v[{64+r}:{65+r}], v[{96+r}:{97+r}] neg_lo:[0,1] neg_hi:[0,1]']
    while wl or vl:
        if wl: a(wl.pop(0))
        for _ in range(3):
            if vl: a(vl.pop(0))
    for t in range(2):
        for q in range(4): a(f'ds_write_b128 v10, v[{64+16*t+4*q}:{64+16*t+4*q+3}] offset:{(4+t)*4096+q*1024}')
    a('v_lshlrev_b32 v11, 2, v1'); a('v_add_u32 v11, s26, v11'); a('v_accvgpr_read_b32 v8, a96')
    a('ds_write_b32 v11, v8 offset:24576')
    for r in range(16): a(f'v_lshlrev_b32 v{32+r}, 16, v{32+r}')
    a('s_mov_b32 s60, 0xbfb8aa3b'); a('s_mov_b32 s61, s60'); a('s_mov_b32 s62, 1.0'); a('s_mov_b32 s63, 1.0')
    a('v_mov_b32 v52, v9'); a('v_xor_b32 v53, 0x80000000, v9')
    a('s_waitcnt lgkmcnt(0)'); a('s_barrier'); a.stamp()
    a('s_lshl_b32 s27, s7, 12'); a('v_add_u32 v10, s27, v3')
    a('s_xor_b32 s27, s22, s23'); a('s_add_u32 s27, s27, 4'); a('s_lshl_b32 s27, s27, 12'); a('v_add_u32 v11, s27, v3')
    a('v_add_u32 v6, 49664, v10'); a('v_add_u32 v7, 49664, v11')
    for sw in range(4):
        rb=10 if sw<2 else 6; o=(sw&1)*24832
        for q in range(4): a(f'ds_read_b128 v[{64+16*sw+4*q}:{67+16*sw+4*q}], v{rb} offset:{o+q*1024}')
    for sw in range(4):
        ry=11 if sw<2 else 7; o=(sw&1)*24832
        for q in range(4): a(f'ds_read_b128 v[{128+16*sw+4*q}:{131+16*sw+4*q}], v{ry} offset:{o+q*1024}')
    a('v_lshlrev_b32 v8, 2, v4'); a('v_add_u32 v2, 49664, v8')
    a('ds_read_b32 v48, v8 offset:24576'); a(f'ds_read_b32 v49, v8 offset:{24576+24832}')
    a('ds_read_b32 v50, v2 offset:24576'); a(f'ds_read_b32 v51, v2 offset:{24576+24832}')
    def pk(op,d,x,y): a(f'v_pk_{op}_f32 v[{d}:{d+1}], v[{x}:{x+1}], {y}')
    a('s_waitcnt lgkmcnt(15)')
    for r in range(0,16,2):
        pk('add',64+r,64+r,f'v[{80+r}:{81+r}]'); pk('add',96+r,96+r,f'v[{112+r}:{113+r}]')
    for r in range(0,16,2): pk('add',64+r,64+r,f'v[{96+r}:{97+r}]')
    for r in range(0,16,2): pk('mul',96+r,64+r,'s[60:61]')
    for r in range(16): a(f'v_exp_f32 v{96+r}, v{96+r}')
    for r in range(0,16,2): pk('add',96+r,96+r,'s[62:63]')
    for r in range(16): a(f'v_rcp_f32 v{96+r}, v{96+r}')
    a('s_waitcnt lgkmcnt(0)')
    for r in range(0,16,2):
        pk('add',128+r,128+r,f'v[{144+r}:{145+r}]'); pk('add',160+r,160+r,f'v[{176+r}:{177+r}]')
    for r in range(0,16,2): pk('add',128+r,128+r,f'v[{160+r}:{161+r}]')
    for r in range(0,16,2): pk('add',128+r,128+r,'v[52:53]')
    a('v_add_f32 v48, v48, v49'); a('v_add_f32 v50, v50, v51'); a('v_add_f32 v48, v48, v50'); a('v_add_f32 v48, v48, v9')
    a('v_cndmask_b32 v128, v128, v48, s[30:31]')
    a('s_or_b32 s27, s6, s23'); a('v_or_b32 v8, s27, v4'); a('v_cmp_eq_u32 vcc, 0, v8'); a('v_mov_b32 v2, 0'); a('s_nop 0')
    a('s_cbranch_vccz K2_NOCOL')
    for r in range(16): a(f'v_cndmask_b32 v{128+r}, v{128+r}, v2, vcc')
    a.lab('K2_NOCOL')
    for r in range(0,16,2): pk('mul',64+r,64+r,f'v[{128+r}:{129+r}]')
    for r in range(0,16,2): a(f'v_pk_fma_f32 v[{64+r}:{65+r}], v[{64+r}:{65+r}], v[{96+r}:{97+r}], v[{32+r}:{33+r}]')
    for r in range(0,16,2): a(f'v_cvt_pk_bf16_f32 v{64+r}, v{64+r}, v{65+r}')
    for r in range(16): a(f'buffer_store_short{"_d16_hi" if r&1 else ""} v{64+(r&~1)}, v{16+r}, s[16:19], 0 offen')
    a.stamp()
    if STAMPON(): a('s_waitcnt vmcnt(0)')
    a.stamp(); a.stamp_out(1)
    a.lab('K2_END')
    a('s_endpgm')
    return K,a.txt()
```
